```python
import torch

def _softmax(x, axis=-1):
    return torch.softmax(x, dim=axis)
def _gelu(x):
    return torch.nn.functional.gelu(x, approximate="tanh")
def _silu(x):
    return torch.nn.functional.silu(x)
def _sigmoid(x):
    return torch.sigmoid(x)
def _layernorm(x, axis=-1, eps=1e-5):
    m = x.mean(dim=axis, keepdim=True)
    v = x.var(dim=axis, keepdim=True, unbiased=False)
    return (x - m) / torch.sqrt(v + eps)
def _scatter_add(tgt, idx, src, axis=0):
    return tgt.clone().index_add_(axis, idx, src)
def _segment_sum(src, seg, n):
    out = torch.zeros((n,) + src.shape[1:], dtype=src.dtype)
    return out.index_add_(0, seg, src)
def _pad(x, pw):
    flat = tuple(v for pair in reversed(pw) for v in pair)
    return torch.nn.functional.pad(x, flat)

kernel_name = 'concat_heads__softmax_full_mha__sliding_local_dilated__prompt'

def setup_inputs():

    _w = (lambda a: (lambda t: t.to(torch.bfloat16) if t.is_floating_point() else t)(torch.as_tensor(a)))
    def _A_setup():
        B, S, D = 1, 2048, 512
        return {
            "x": _w((lambda *s: torch.randn(*s, dtype=torch.bfloat16) * 0.2)(B, S, D)),
            "wqkv": _w((lambda *s: torch.randn(*s, dtype=torch.bfloat16) * 0.4)(D, 3 * D)),
            "wo": _w((lambda *s: torch.randn(*s, dtype=torch.bfloat16) * 0.1)(D, D)),
        }
    _A_in = _A_setup()

    def _B_setup():
        B, S, D = 1, 2048, 512
        return {
            "x": _w((lambda *s: torch.randn(*s, dtype=torch.bfloat16) * 0.4)(B, S, D)),
            "wqkv": _w((lambda *s: torch.randn(*s, dtype=torch.bfloat16) * 0.4)(D, 3 * D)),
            "wo": _w((lambda *s: torch.randn(*s, dtype=torch.bfloat16) * 0.05)(D, D)),
        }
    _B_in = _B_setup()

    return {
        "A_x": _A_in["x"],
        "A_wqkv": _A_in["wqkv"],
        "A_wo": _A_in["wo"],
        "B_x": _B_in["x"],
        "B_wqkv": _B_in["wqkv"],
        "B_wo": _B_in["wo"],
    }

def reference(A_x, A_wqkv, A_wo, B_x, B_wqkv, B_wo):
    def _A_ref(x, wqkv, wo):
        B, S, D = x.shape
        H = 32; Dh = D // H
        qkv = (lambda x, *d: x.permute(*d))((x @ wqkv).reshape(B, S, 3, H, Dh), 2, 0, 3, 1, 4)
        q, k, v = qkv[0], qkv[1], qkv[2]
        scale = Dh ** -0.5
        scores = torch.einsum("bhqd,bhkd->bhqk", q, k) * scale
        p = _softmax(scores, axis=-1)
        o = torch.einsum("bhqk,bhkd->bhqd", p, v)
        return (lambda x, *d: x.permute(*d))(o, 0, 2, 1, 3).reshape(B, S, D) @ wo

    def _B_ref(x, wqkv, wo):
        B, S, D = x.shape
        H = 32; Dh = D // H
        W, dil = 8, 2
        qkv = (lambda x, *d: x.permute(*d))((x @ wqkv).reshape(B, S, 3, H, Dh), 2, 0, 3, 1, 4)
        q, k, v = qkv[0], qkv[1], qkv[2]
        scale = Dh ** -0.5
        pos = torch.arange(S)
        off = torch.arange(W) * dil
        idx = pos[:, None] - off[None, :]
        mask = idx >= 0
        idx_c = torch.where(mask, idx, 0).reshape(-1)
        kg = k[:, :, idx_c, :].reshape(B, H, S, W, Dh)
        vg = v[:, :, idx_c, :].reshape(B, H, S, W, Dh)
        logits = torch.einsum("bhsd,bhswd->bhsw", q, kg) * scale
        logits = torch.where(mask[None, None, :, :], logits, -1e9)
        attn = _softmax(logits, axis=-1)
        o = torch.einsum("bhsw,bhswd->bhsd", attn, vg)
        return (lambda x, *d: x.permute(*d))(o, 0, 2, 1, 3).reshape(B, S, D) @ wo

    a = _A_ref(A_x, A_wqkv, A_wo)
    b = _B_ref(B_x, B_wqkv, B_wo)
    return torch.concatenate([a, b], axis=-1)
```

```python
import sys, math, struct

NAME = "concat_heads__softmax_full_mha__sliding_local_dilated__prompt"

class Cfg:
    stamps = False
    flag_stage = 2
    ob_iter = 2
    prio_iter = 5
    force_fallback = False
    spin = 400000

def f32(x): return "0x%08x" % struct.unpack("<I", struct.pack("<f", x))[0]

WS_KV = 0
WS_OA = 4 << 20
WS_OB = 6 << 20
WS_FL = 8 << 20
FL_KV = WS_FL
FL_OB = WS_FL + 256 * 128
FL_OA = WS_FL + 512 * 128
WS_ST = WS_FL + 768 * 128
WS_SIZE = WS_ST + 256 * 8 * 128

NX, NW = 6, 12
L_X = 0
L_H = 49152
L_W = 65536
L_QX = 32768
L_MX = L_QX + 8192
L_WO = 0
L_O = 65536
L_CB = 131072
L_FB = L_CB + 18432
LDS_BYTES = 163840

S_XA, S_WA, S_WOA, S_XB, S_WB, S_WOB, S_OUT, S_DBG, S_WS = 24, 28, 32, 36, 40, 44, 48, 52, 56
S_WAVE, S_RB, S_HG, S_RBB, S_HGB, S_RBO, S_NB = 60, 61, 62, 63, 64, 65, 66
S_T0, S_T1, S_T2, S_T3 = 67, 68, 69, 70
S_LB = 71
S_BXA, S_BWA, S_BXB, S_BWB = 72, 73, 74, 75
S_CUR = 76
S_MASK = 80
S_OFF, S_IT, S_PM0, S_PSO, S_PSTEP, S_PASS, S_SPIN, S_C = 82, 83, 84, 85, 86, 87, 88, 89
S_HM = 100
S_STAMP = 4

class Asm:
    def __init__(self): self.L = []; self.nlab = 0
    def __call__(self, s):
        for line in s.strip("\n").split("\n"):
            line = line.strip()
            if not line: continue
            if line.endswith(":") or line.startswith(";") or line.startswith("."): self.L.append(line)
            else: self.L.append("    " + line)
    def lab(self, p="L"):
        self.nlab += 1; return f"{p}_{self.nlab}"
    def text(self): return "\n".join(self.L) + "\n"

def vr(a, n): return f"v[{a}:{a+n-1}]"
def sr(a, n=4): return f"s[{a}:{a+n-1}]"

class Filler:
    def __init__(self): self.q = []; self.wait = 0
    def add(self, *items):
        for it in items:
            if isinstance(it, str):
                self.q += [x.strip() for x in it.strip().split("\n") if x.strip()]
            else: self.q.append(it)
    def tick(self, n=1): self.wait = max(0, self.wait - n)
    def take(self, a, k):
        while k > 0 and self.q:
            if isinstance(self.q[0], int):
                self.wait = max(self.wait, self.q.pop(0)); continue
            if self.wait > 0: return
            a(self.q.pop(0)); k -= 1
    def flush(self, a):
        while self.q:
            if isinstance(self.q[0], int):
                self.wait = max(self.wait, self.q.pop(0)); continue
            while self.wait > 0:
                n = min(self.wait, 16); a(f"s_nop {n-1}"); self.wait -= n
            a(self.q.pop(0))

def gen(cfg):
    a = Asm()
    nst = [0]
    def stamp(i):
        if cfg.stamps:
            a(f"s_memtime s[90:91]\ns_waitcnt lgkmcnt(0)\ns_mov_b32 s{S_STAMP+i}, s90")
    def srd(d, base, nbytes):
        a(f"s_mov_b32 s{d}, s{base}\ns_mov_b32 s{d+1}, s{base+1}\ns_mov_b32 s{d+2}, {hex(nbytes)}\ns_mov_b32 s{d+3}, 0x00020000")
    def poll(voff, nlanes, srdi, wide=False, tmp=None):
        lp, dn = a.lab("L_poll"), a.lab("L_pdone")
        if nlanes < 32: a(f"s_mov_b64 exec, {hex((1 << nlanes) - 1)}")
        else: a("s_mov_b32 exec_hi, 0")
        a(f"s_mov_b32 s{S_SPIN}, {cfg.spin}")
        a(f"{lp}:")
        a(f"buffer_load_dword v{tmp}, v{voff}, {sr(srdi)}, 0 offen sc1")
        a(f"s_waitcnt vmcnt(0)")
        a(f"v_cmp_ne_u32 vcc, 1, v{tmp}")
        a(f"s_cbranch_vccz {dn}")
        a(f"s_sub_u32 s{S_SPIN}, s{S_SPIN}, 1\ns_cmp_lg_u32 s{S_SPIN}, 0\ns_cbranch_scc1 {lp}")
        a(f"{dn}:")
        a("s_mov_b64 exec, -1")

    xp = [("A", s) for s in range(8)] + [("B", s) for s in range(8)]
    wp = []
    for s in range(8): wp += [("A", 1, s), ("A", 2, s)]
    for s in range(8): wp += [("A", 0, s)]
    for s in range(8): wp += [("B", 0, s), ("B", 1, s), ("B", 2, s)]
    xslot = {p: i % NX for i, p in enumerate(xp)}
    wslot = {p: i % NW for i, p in enumerate(wp)}
    stages = []
    for s in range(8): stages.append(dict(n=f"KV{s}", x=[("A", s)], w=[("A", 1, s), ("A", 2, s)], h=False))
    for s in range(4): stages.append(dict(n=f"Q{s}", x=[], w=[("A", 0, 2*s), ("A", 0, 2*s+1)], h=False))
    for s in range(8): stages.append(dict(n=f"B{s}", x=[("B", s)], w=[("B", 0, s), ("B", 1, s), ("B", 2, s)], h=(s == 0)))

    a(f"""
s_cmp_ge_u32 s2, 256
s_cbranch_scc1 L_exit
s_load_dwordx16 s[4:19], s[0:1], 0
s_load_dwordx2 s[20:21], s[0:1], 64
""")
    if cfg.stamps:
        a("s_memrealtime s[92:93]\ns_memtime s[94:95]")
    a(f"""
v_lshrrev_b32 v2, 6, v0
v_and_b32 v1, 63, v0
v_readfirstlane_b32 s{S_WAVE}, v2
s_and_b32 s{S_T0}, s2, 7
s_lshr_b32 s{S_T1}, s2, 3
s_and_b32 s{S_HG}, s{S_T0}, 3
s_lshl_b32 s{S_HG}, s{S_HG}, 1
s_and_b32 s{S_T2}, s{S_T1}, 1
s_or_b32 s{S_HG}, s{S_HG}, s{S_T2}
s_lshr_b32 s{S_RB}, s{S_T0}, 2
s_lshl_b32 s{S_RB}, s{S_RB}, 4
s_lshr_b32 s{S_T2}, s{S_T1}, 1
s_or_b32 s{S_RB}, s{S_RB}, s{S_T2}
s_and_b32 s{S_HGB}, s{S_T0}, 1
s_lshl_b32 s{S_HGB}, s{S_HGB}, 2
s_and_b32 s{S_T2}, s{S_T1}, 3
s_or_b32 s{S_HGB}, s{S_HGB}, s{S_T2}
s_lshr_b32 s{S_RBB}, s{S_T0}, 1
s_lshl_b32 s{S_RBB}, s{S_RBB}, 3
s_lshr_b32 s{S_T2}, s{S_T1}, 2
s_or_b32 s{S_RBB}, s{S_RBB}, s{S_T2}
s_lshl_b32 s{S_RBO}, s{S_T0}, 2
s_lshr_b32 s{S_T2}, s{S_T1}, 3
s_or_b32 s{S_RBO}, s{S_RBO}, s{S_T2}
s_and_b32 s{S_NB}, s{S_T1}, 7
s_mov_b32 s{S_MASK}, 0xffff
s_mov_b32 s{S_MASK+1}, 0xffff
s_mov_b32 s{S_PASS}, 0
s_mov_b32 s{S_C}, {f32(0.25 * math.log2(math.e))}
s_cmp_lt_u32 s{S_WAVE}, 4
s_cbranch_scc1 L_compute
""")
    def all_srds(first):
        rest = [(S_XA, 4, 2 << 20), (S_WA, 6, 3 << 19), (S_WOA, 8, 1 << 19), (S_XB, 10, 2 << 20), (S_WB, 12, 3 << 19),
                (S_WOB, 14, 1 << 19), (S_OUT, 16, 4 << 20), (S_DBG, 18, 256), (S_WS, 20, WS_SIZE)]
        for d, b, n in rest:
            if (d in (S_XA, S_WA)) == first: srd(d, b, n)

    a(f"""
; ---------------- loader ----------------
s_sub_u32 s{S_T0}, s{S_WAVE}, 4
s_lshl_b32 s{S_LB}, s{S_T0}, 11
s_lshl_b32 s{S_T1}, s{S_T0}, 4
v_lshrrev_b32 v10, 3, v1
v_add_u32 v11, s{S_T1}, v10
v_and_b32 v12, 7, v1
v_lshrrev_b32 v13, 4, v1
v_xor_b32 v14, v12, v13
v_lshlrev_b32 v14, 4, v14
v_xor_b32 v15, 64, v14
v_lshl_add_u32 v2, v11, 10, v14
v_lshl_add_u32 v3, v11, 10, v15
v_add_u32 v3, 7168, v3
v_and_b32 v13, 1, v13
v_lshlrev_b32 v13, 2, v13
v_xor_b32 v13, v12, v13
v_lshlrev_b32 v13, 4, v13            ; W chunk
v_mul_u32_u24 v4, 3072, v11
v_add_u32 v4, v4, v13
v_add_u32 v5, {8*3072-1024}, v4
s_lshl_b32 s{S_BXA}, s{S_RB}, 16
s_lshl_b32 s{S_BWA}, s{S_HG}, 7
s_lshl_b32 s{S_BXB}, s{S_RBB}, 16
s_lshl_b32 s{S_BWB}, s{S_HGB}, 7
s_waitcnt lgkmcnt(0)
""")
    all_srds(True)
    issued = []
    def issue_x(p):
        br, s = p
        a(f"s_add_u32 m0, s{S_LB}, {L_X + xslot[p]*8192}")
        a(f"s_add_u32 s{S_T0}, s{S_BXA if br == 'A' else S_BXB}, {s*128}")
        v = 2 if br == "A" else 6; srdi = S_XA if br == "A" else S_XB
        a(f"buffer_load_dwordx4 v{v}, {sr(srdi)}, s{S_T0} offen lds")
        a(f"buffer_load_dwordx4 v{v+1}, {sr(srdi)}, s{S_T0} offen offset:1024 lds")
        issued.append((("x",) + p, 2))
    def issue_w(p):
        br, ty, s = p
        a(f"s_add_u32 m0, s{S_LB}, {L_W + wslot[p]*8192}")
        a(f"s_add_u32 s{S_T0}, s{S_BWA if br == 'A' else S_BWB}, {s*64*3072 + ty*1024}")
        srdi = S_WA if br == "A" else S_WB
        a(f"buffer_load_dwordx4 v4, {sr(srdi)}, s{S_T0} offen lds")
        a(f"buffer_load_dwordx4 v5, {sr(srdi)}, s{S_T0} offen offset:1024 lds")
        issued.append((("w",) + p, 2))
    def issue_h():
        for q in range(2):
            a(f"s_lshl_b32 s{S_T1}, s{S_LB}, 1")
            a(f"s_add_u32 m0, s{S_T1}, {L_H + q*2048}")
            a(f"s_lshr_b32 s{S_T0}, s{S_LB}, 3")
            a(f"s_add_u32 s{S_T0}, s{S_T0}, {q*128}")
            a(f"buffer_load_dwordx4 v8, {sr(S_XB)}, s{S_T0} offen lds")
            a(f"buffer_load_dwordx4 v8, {sr(S_XB)}, s{S_T0} offen offset:1024 lds")
        issued.append((("h",), 4))
    xi = wi = 0
    for s in range(6):
        issue_x(xp[xi]); xi += 1
        issue_w(wp[wi]); issue_w(wp[wi+1]); wi += 2
    all_srds(False)
    stamp(0)
    a(f"""
v_and_b32 v16, 31, v11
v_lshrrev_b32 v17, 5, v11
v_lshl_add_u32 v16, v16, 1, v17
v_lshl_add_u32 v6, v16, 10, v14
v_lshl_add_u32 v7, v16, 10, v15
v_add_u32 v7, {16*1024-1024}, v7
s_sub_u32 s{S_T0}, s{S_BXB}, 16384
s_cmp_eq_u32 s{S_RBB}, 0
s_cselect_b32 s{S_T0}, 0x80000000, s{S_T0}
v_lshl_add_u32 v8, v10, 11, v14
v_add_u32 v8, s{S_T0}, v8
""")
    def need_count(keys):
        last = max(i for i, (k, n) in enumerate(issued) if k in keys)
        return sum(n for k, n in issued[last+1:])
    for si, st in enumerate(stages):
        keys = [("x",) + p for p in st["x"]] + [("w",) + p for p in st["w"]] + ([("h",)] if st["h"] else [])
        a(f"s_waitcnt vmcnt({need_count(keys)})")
        if si == 0: stamp(1)
        a("s_barrier")
        if si > 0:
            pv = stages[si-1]
            nx, nw = len(pv["x"]), len(pv["w"])
            todo_w = wp[wi:wi+nw]; wi += len(todo_w)
            todo_x = xp[xi:xi+nx]; xi += len(todo_x)
            if todo_x and todo_x[0][0] == "A":
                for p in todo_x: issue_x(p)
                for p in todo_w: issue_w(p)
            else:
                for p in todo_w: issue_w(p)
                for p in todo_x: issue_x(p)
            if si == 3: issue_h()
    assert xi == len(xp) and wi == len(wp)
    stamp(2)
    a("s_branch L_qread")

    XP = 128
    a(f"""
L_compute:
s_cmp_eq_u32 s{S_RBB}, 0
s_cselect_b32 s{S_HM}, 64, 0
s_and_b32 s{S_T0}, s{S_WAVE}, 1
s_lshr_b32 s{S_T1}, s{S_WAVE}, 1
v_and_b32 v14, 31, v1
v_lshrrev_b32 v15, 5, v1             ; h
v_bfe_u32 v16, v1, 1, 3
v_xor_b32 v16, v16, v15
v_lshlrev_b32 v16, 4, v16
v_lshl_add_u32 v2, v14, 7, v16
s_lshl_b32 s{S_T2}, s{S_T0}, 12
v_add_u32 v2, s{S_T2}, v2
v_xor_b32 v3, 32, v2
v_xor_b32 v4, 64, v2
v_xor_b32 v5, 96, v2
v_and_b32 v16, 7, v1
v_lshrrev_b32 v17, 1, v16
v_xor_b32 v17, v17, v15
v_lshlrev_b32 v17, 4, v17
v_lshl_add_u32 v6, v16, 7, v17
s_lshl_b32 s{S_T2}, s{S_T0}, 10
v_add_u32 v6, s{S_T2}, v6
v_xor_b32 v7, 32, v6
v_xor_b32 v8, 64, v6
v_xor_b32 v9, 96, v6
v_bfe_u32 v16, v1, 2, 2              ; r4
v_lshl_add_u32 v17, v15, 3, v16      ; 8h + r4
v_and_b32 v18, 3, v1
v_lshlrev_b32 v18, 3, v18            ; 8*c4
v_bfe_u32 v19, v1, 4, 1
v_lshl_add_u32 v18, v19, 5, v18      ; + 32*nsub
v_bfe_u32 v19, v1, 3, 1              ; (r4>>1)&1
v_xor_b32 v19, s{S_T1}, v19
v_lshl_add_u32 v18, v19, 6, v18
v_lshl_add_u32 v10, v17, 7, v18
v_add_u32 v10, {L_W}, v10
v_add_u32 v11, 0x10000, v10
s_lshl_b32 s{S_T2}, s{S_HG}, 1
s_add_u32 s{S_T2}, s{S_T2}, s{S_T1}
s_lshl_b32 s{S_T2}, s{S_T2}, 18
s_lshl_b32 s{S_T3}, s{S_RB}, 1
s_add_u32 s{S_T3}, s{S_T3}, s{S_T0}
s_lshl_b32 s{S_T3}, s{S_T3}, 11
s_add_u32 s{S_T2}, s{S_T2}, s{S_T3}
v_and_b32 v16, 0x33, v1
v_bfe_u32 v17, v1, 2, 1
v_lshl_or_b32 v16, v17, 3, v16
v_bfe_u32 v17, v1, 3, 1
v_lshl_or_b32 v16, v17, 2, v16
v_lshlrev_b32 v12, 4, v16
v_add_u32 v12, s{S_T2}, v12
v_and_b32 v16, 15, v1
v_lshlrev_b32 v16, 4, v16
v_lshl_add_u32 v16, v15, 8, v16
v_bfe_u32 v17, v1, 4, 1
v_lshl_add_u32 v13, v17, 17, v16
v_add_u32 v13, s{S_T2}, v13
s_waitcnt lgkmcnt(0)
""")
    all_srds(True); all_srds(False)
    stamp(0)
    lskip = a.lab()
    a(f"""
s_or_b32 s{S_T0}, s2, s{S_WAVE}
s_cmp_lg_u32 s{S_T0}, 0
s_cbranch_scc1 {lskip}
v_mov_b32 v16, 0
v_mov_b32 v17, 0
v_mov_b32 v18, 0
v_mov_b32 v19, 0
v_lshlrev_b32 v20, 7, v1
""")
    for i in range(12):
        a(f"s_mov_b32 s{S_T0}, {WS_FL + i*8192}")
        a(f"buffer_store_dwordx4 v[16:19], v20, {sr(S_WS)}, s{S_T0} offen sc1")
    a(f"""
s_waitcnt vmcnt(0)
v_mov_b32 v21, 1
s_mov_b64 exec, 1
buffer_store_dword v21, v16, {sr(S_DBG)}, 0 offen sc1
s_mov_b64 exec, -1
{lskip}:
""")
    def wread(dst, p, ks):
        sl = wslot[p]; base = 10 if sl < 8 else 11; off = (sl % 8) * 8192 + ks * 2048
        return [f"ds_read_b64_tr_b16 {vr(dst,2)}, v{base} offset:{off}", f"ds_read_b64_tr_b16 {vr(dst+2,2)}, v{base} offset:{off+512}"]
    ACK, ACV, ACQ = 16, 32, 48
    BQ, BK, BV, BKH, BVH = 168, 184, 200, 216, 16
    steps = []
    for s in range(8):
        for hs in range(2):
            buf = 64 + 16 * (len(steps) % 2); rd = []; mf = []
            for j in range(2):
                ks = 2*hs + j; g = 4*s + ks; x = XP + 4*g
                rd.append(f"ds_read_b128 {vr(x,4)}, v{2+ks} offset:{L_X + xslot[('A',s)]*8192}")
                rd += wread(buf + 8*j, ("A", 1, s), ks) + wread(buf + 8*j + 4, ("A", 2, s), ks)
                mf.append(f"v_mfma_f32_32x32x16_bf16 {vr(ACK,16)}, {vr(buf+8*j,4)}, {vr(x,4)}, {vr(ACK,16) if g else 0}")
                mf.append(f"v_mfma_f32_32x32x16_bf16 {vr(ACV,16)}, {vr(x,4)}, {vr(buf+8*j+4,4)}, {vr(ACV,16) if g else 0}")
            steps.append(dict(st=s, first=(hs == 0), rd=rd, mf=mf, tag=("KV", s, hs)))
    for s in range(8):
        buf = 64 + 16 * (len(steps) % 2); rd = []; mf = []
        for ks in range(4):
            g = 4*s + ks
            rd += wread(buf + 4*ks, ("A", 0, s), ks)
            mf.append(f"v_mfma_f32_32x32x16_bf16 {vr(ACQ,16)}, {vr(buf+4*ks,4)}, {vr(XP+4*g,4)}, {vr(ACQ,16) if g else 0}")
        steps.append(dict(st=8 + s//2, first=(s % 2 == 0), rd=rd, mf=mf, tag=("Q", s, 0)))
    for s in range(8):
        for ks in range(4):
            g = 4*s + ks; buf = 128 + 20 * (g % 2)
            x, xh, wq, wk, wv = buf, buf+4, buf+8, buf+12, buf+16
            rd = [f"ds_read_b128 {vr(x,4)}, v{2+ks} offset:{L_X + xslot[('B',s)]*8192}"]
            rd += wread(wq, ("B", 0, s), ks) + wread(wk, ("B", 1, s), ks) + wread(wv, ("B", 2, s), ks)
            rd.append(f"ds_read_b128 {vr(xh,4)}, v{6+ks} offset:{L_H + s*2048}")
            c = lambda r: vr(r, 16) if g else 0
            mf = [f"v_mfma_f32_32x32x16_bf16 {vr(BQ,16)}, {vr(wq,4)}, {vr(x,4)}, {c(BQ)}",
                  f"v_mfma_f32_32x32x16_bf16 {vr(BK,16)}, {vr(wk,4)}, {vr(x,4)}, {c(BK)}",
                  f"v_mfma_f32_32x32x16_bf16 {vr(BV,16)}, {vr(x,4)}, {vr(wv,4)}, {c(BV)}",
                  f"v_mfma_f32_32x32x16_bf16 {vr(BKH,16)}, {vr(wk,4)}, {vr(xh,4)}, {c(BKH)}",
                  f"v_mfma_f32_32x32x16_bf16 {vr(BVH,16)}, {vr(xh,4)}, {vr(wv,4)}, {c(BVH)}"]
            steps.append(dict(st=12 + s, first=(ks == 0), rd=rd, mf=mf, tag=("B", s, ks)))

    KBF, VBF, QBF, NEGM = 96, 104, 104, 112
    MP, MD, MA = 64, 68, 84
    fill = Filler()
    def q_epilogue_fillers():
        S0, S1 = 32, 232
        fill.add(12)
        for i in range(16): fill.add(f"v_mul_f32 v{ACQ+i}, s{S_C}, v{ACQ+i}")
        for i in range(8): fill.add(f"v_cvt_pk_bf16_f32 v{QBF+i}, v{ACQ+2*i}, v{ACQ+2*i+1}")
        fill.add(2)
        fill.add(f"v_mfma_f32_32x32x16_bf16 {vr(S0,16)}, {vr(KBF,4)}, {vr(QBF,4)}, 0")
        fill.add(f"v_mfma_f32_32x32x16_bf16 {vr(S1,16)}, {vr(KBF+4,4)}, {vr(QBF+4,4)}, 0")
        fill.add(12)
        for e, S in enumerate((S0, S1)):
            m = NEGM + e
            fill.add(f"v_max3_f32 v{m}, v{S}, v{S+1}, v{S+2}")
            for i in range(3, 15, 2): fill.add(f"v_max3_f32 v{m}, v{m}, v{S+i}, v{S+i+1}")
            fill.add(f"v_max_f32 v{m}, v{m}, v{S+15}")
            fill.add(f"v_mov_b32 v{S}, v{m}")
        fill.add(2)
        for e, S in enumerate((S0, S1)): fill.add(f"v_permlane32_swap_b32 v{NEGM+e}, v{S}")
        fill.add(2)
        for e, S in enumerate((S0, S1)):
            fill.add(f"v_max_f32 v{NEGM+e}, v{NEGM+e}, v{S}")
            fill.add(f"v_sub_f32 v{NEGM+e}, 0, v{NEGM+e}")
        fill.add(f"""
s_and_b32 s{S_T0}, s{S_WAVE}, 1
s_lshr_b32 s{S_T1}, s{S_WAVE}, 1
s_lshl_b32 s{S_T1}, s{S_T1}, 2
s_add_u32 s{S_T0}, s{S_T0}, s{S_T1}
s_lshl_b32 s{S_T0}, s{S_T0}, 6
v_add_u32 v116, s{S_T0}, v1
v_lshlrev_b32 v117, 2, v116
v_lshlrev_b32 v116, 4, v116
""")
    def mask_fillers():
        fill.add(f"v_lshlrev_b32 v118, 2, v15\nv_sub_u32 v118, v14, v118\nv_mov_b32 v119, 0xff800000\nv_mov_b32 v120, 0xffff\nv_mov_b32 v121, 0xffff0000")
        fill.add(f"v_add_u32 v122, s{S_HM}, v118")
        def one(dst_c, key, prev, and_dst, hi):
            if prev: fill.add(f"v_cmp_gt_i32 s[98:99], {key}, v122")
            else:    fill.add(f"v_subrev_u32 v123, {key}, v118\nv_cmp_gt_u32 s[98:99], 8, v123")
            fill.add(2)
            fill.add(f"v_cndmask_b32 v{dst_c}, v119, 0, s[98:99]")
            if not hi: fill.add(f"v_cndmask_b32 v{and_dst}, 0, v120, s[98:99]")
            else:      fill.add(f"v_cndmask_b32 v123, 0, v121, s[98:99]\nv_or_b32 v{and_dst}, v{and_dst}, v123")
        for aa in range(4):
            for b in range(4): one(MD + 4*aa + b, 8*aa + b, False, MA + 2*aa + (b >> 1), b & 1)
        for b in range(4): one(MP + b, b, True, MA + 8 + (b >> 1), b & 1)

    a("s_barrier")
    stamp(1)
    for r in steps[0]["rd"]: a(r)
    for i, stp in enumerate(steps):
        nxt = steps[i+1] if i + 1 < len(steps) else None
        tag = stp["tag"]
        a("s_waitcnt lgkmcnt(0)"); fill.tick()
        publish = nxt and nxt["first"] and tag[0] == "B" and tag[1] == cfg.flag_stage
        if publish:
            ls = a.lab()
            a("s_waitcnt vmcnt(0)")
            a(f"s_cmp_lg_u32 s{S_WAVE}, 0\ns_cbranch_scc1 {ls}")
            a(f"v_cmp_eq_u32 vcc, 1, v125\ns_nop 4\ns_cbranch_vccnz {ls}")
            poll(124, 1, S_DBG, tmp=125)
            a(f"{ls}:")
            stamp(4)
        if nxt is None:
            pass
        if nxt and nxt["first"]:
            a("s_barrier"); fill.tick()
        if publish:
            ls = a.lab()
            a(f"s_cmp_lg_u32 s{S_WAVE}, 0\ns_cbranch_scc1 {ls}")
            a(f"s_lshl_b32 s{S_T2}, s{S_HG}, 5\ns_add_u32 s{S_T2}, s{S_T2}, s{S_RB}\ns_lshl_b32 s{S_T2}, s{S_T2}, 7\ns_add_u32 s{S_T2}, s{S_T2}, {FL_KV}")
            a(f"v_mov_b32 v125, 1\ns_mov_b64 exec, 1\nbuffer_store_dword v125, v124, {sr(S_WS)}, s{S_T2} offen sc1\ns_mov_b64 exec, -1")
            a(f"{ls}:")
        rd = list(nxt["rd"]) if nxt else []
        if tag == ("B", 4, 0):
            assert not any("v_sub_f32 v113" in str(x) for x in fill.q) and not any("v116" in str(x) for x in fill.q)
            rd += [f"ds_write_b128 v116, {vr(QBF,4)} offset:{L_QX}", f"ds_write_b128 v116, {vr(QBF+4,4)} offset:{L_QX+2048}",
                   f"ds_write_b32 v117, v{NEGM} offset:{L_MX}", f"ds_write_b32 v117, v{NEGM+1} offset:{L_MX+512}"]
        mf = stp["mf"]
        a(mf[0]); fill.tick()
        half = (len(rd) + 1) // 2
        for r in rd[:half]: a(r); fill.tick()
        a(mf[1]); fill.tick()
        for r in rd[half:]: a(r); fill.tick()
        for m in mf[2:]:
            a(m); fill.tick()
            if tag[0] == "B": fill.take(a, 4)
        if tag == ("KV", 7, 1):
            stamp(2)
            a("s_nop 9")
            a(f"s_mov_b32 s{S_T2}, 0x20000")
            for k in range(8): a(f"v_cvt_pk_bf16_f32 v{KBF+k}, v{ACK+2*k}, v{ACK+2*k+1}")
            a(f"buffer_store_dwordx4 {vr(KBF,4)}, v12, {sr(S_WS)}, 0 offen sc1")
            a(f"buffer_store_dwordx4 {vr(KBF+4,4)}, v12, {sr(S_WS)}, s{S_T2} offen sc1")
            for k in range(8): a(f"v_cvt_pk_bf16_f32 v{VBF+k}, v{ACV+2*k}, v{ACV+2*k+1}")
            a(f"buffer_store_dwordx4 {vr(VBF,4)}, v13, {sr(S_WS)}, 0 offen offset:1024 sc1")
            a(f"buffer_store_dwordx4 {vr(VBF+4,4)}, v13, {sr(S_WS)}, 0 offen offset:1536 sc1")
            a(f"v_mov_b32 v124, 0")
            a(f"buffer_load_dword v125, v124, {sr(S_DBG)}, 0 offen sc1")
        if tag == ("Q", 7, 0):
            stamp(3)
            q_epilogue_fillers(); mask_fillers()
    fill.flush(a)

    AQ0, AQ1, AM = 96, 100, 114
    a(f"""
L_qread:
s_and_b32 s{S_T0}, s{S_WAVE}, 3
s_lshl_b32 s{S_T0}, s{S_T0}, 7
v_add_u32 v116, s{S_T0}, v1
v_lshlrev_b32 v117, 2, v116
v_lshlrev_b32 v116, 4, v116
ds_read_b128 {vr(AQ0,4)}, v116 offset:{L_QX}
ds_read_b128 {vr(AQ1,4)}, v116 offset:{L_QX+1024}
ds_read_b32 v{AM}, v117 offset:{L_MX}
ds_read_b32 v{AM+1}, v117 offset:{L_MX+256}
s_waitcnt lgkmcnt(0)
s_barrier
s_cmp_ge_u32 s{S_WAVE}, 4
s_cbranch_scc1 L_attn_setup
""")
    stamp(5)
    QB, KB, KHB, VB, VHB = 104, 116, 128, 136, 144
    SD, SP, OO = (32, 48), (232, 168), (184, 200)
    PD, PP = (148, 216), (156, 224)
    Z = (160, 248)
    for k in range(8): a(f"v_cvt_pk_bf16_f32 v{QB+k}, v{BQ+2*k}, v{BQ+2*k+1}")
    for k in range(8): a(f"v_cvt_pk_bf16_f32 v{KB+k}, v{BK+2*k}, v{BK+2*k+1}")
    for k in range(8): a(f"v_cvt_pk_bf16_f32 v{KHB+k}, v{BKH+2*k}, v{BKH+2*k+1}")
    a(f"v_mfma_f32_32x32x16_bf16 {vr(SD[0],16)}, {vr(KB,4)}, {vr(QB,4)}, {vr(MD,16)}")
    for k in range(4): a(f"v_cvt_pk_bf16_f32 v{VB+k}, v{BV+2*k}, v{BV+2*k+1}")
    a(f"v_mfma_f32_32x32x16_bf16 {vr(SP[0],16)}, {vr(KHB,4)}, {vr(QB,4)}, {vr(MP,16)}")
    for k in range(4, 8): a(f"v_cvt_pk_bf16_f32 v{VB+k}, v{BV+2*k}, v{BV+2*k+1}")
    a(f"v_mfma_f32_32x32x16_bf16 {vr(SD[1],16)}, {vr(KB+4,4)}, {vr(QB+4,4)}, {vr(MD,16)}")
    for k in range(4): a(f"v_cvt_pk_bf16_f32 v{VHB+k}, v{BVH+2*k}, v{BVH+2*k+1}")
    a(f"v_mfma_f32_32x32x16_bf16 {vr(SP[1],16)}, {vr(KHB+4,4)}, {vr(QB+4,4)}, {vr(MP,16)}")
    for e in range(2): a(f"v_mov_b32 v{PP[e]+2}, 0\nv_mov_b32 v{PP[e]+3}, 0")
    a(f"""
s_and_b32 s{S_T0}, s{S_WAVE}, 1
s_lshl_b32 s{S_T1}, s{S_RBB}, 1
s_add_u32 s{S_T0}, s{S_T0}, s{S_T1}
s_lshl_b32 s{S_T0}, s{S_T0}, 5
s_lshl_b32 s{S_T1}, s{S_HGB}, 2
s_add_u32 s{S_T0}, s{S_T0}, s{S_T1}
s_and_b32 s{S_T1}, s{S_WAVE}, 2
s_add_u32 s{S_T0}, s{S_T0}, s{S_T1}
s_lshl_b32 s{S_T0}, s{S_T0}, 10
s_add_u32 s{S_T0}, s{S_T0}, {WS_OB}
v_lshlrev_b32 v12, 4, v1
""")
    for e in range(2):
        z = Z[e]
        for b in range(4):
            a(f"v_max3_f32 v{z+b}, v{SD[e]+b}, v{SD[e]+4+b}, v{SD[e]+8+b}")
            a(f"v_max3_f32 v{z+b}, v{z+b}, v{SD[e]+12+b}, v{SP[e]+b}")
        a(f"v_max3_f32 v{z+4}, v{z}, v{z+1}, v{z+2}\nv_max_f32 v{z+4}, v{z+4}, v{z+3}\nv_mov_b32 v{z+5}, v{z+4}")
    a("s_nop 1")
    for e in range(2): a(f"v_permlane32_swap_b32 v{Z[e]+4}, v{Z[e]+5}")
    a("s_nop 1")
    for e in range(2):
        z = Z[e]
        a(f"v_max_f32 v{z+4}, v{z+4}, v{z+5}\nv_mul_f32 v{z+4}, s{S_C}, v{z+4}")
        for b in range(4): a(f"v_fma_f32 v{z+b}, v{z+b}, s{S_C}, -v{z+4}")
        for b in range(4): a(f"v_exp_f32 v{z+b}, v{z+b}")
    for e in range(2):
        z = Z[e]
        a(f"v_add_f32 v{z+4}, v{z}, v{z+1}\nv_add_f32 v{z+5}, v{z+2}, v{z+3}\nv_add_f32 v{z+4}, v{z+4}, v{z+5}\nv_mov_b32 v{z+5}, v{z+4}")
    a("s_nop 1")
    for e in range(2): a(f"v_permlane32_swap_b32 v{Z[e]+4}, v{Z[e]+5}")
    a("s_nop 1")
    for e in range(2): a(f"v_add_f32 v{Z[e]+4}, v{Z[e]+4}, v{Z[e]+5}")
    for e in range(2): a(f"v_rcp_f32 v{Z[e]+4}, v{Z[e]+4}")
    a("s_nop 0")
    for e in range(2):
        z = Z[e]
        for b in range(4): a(f"v_mul_f32 v{z+b}, v{z+b}, v{z+4}")
        a(f"v_cvt_pk_bf16_f32 v{z}, v{z}, v{z+1}\nv_cvt_pk_bf16_f32 v{z+1}, v{z+2}, v{z+3}")
        for k in range(8): a(f"v_and_b32 v{PD[e]+k}, v{z+(k&1)}, v{MA+k}")
        for k in range(2): a(f"v_and_b32 v{PP[e]+k}, v{z+k}, v{MA+8+k}")
        a(f"v_mfma_f32_32x32x16_bf16 {vr(OO[e],16)}, {vr(VB,4)}, {vr(PD[e],4)}, 0")
        a(f"v_mfma_f32_32x32x16_bf16 {vr(OO[e],16)}, {vr(VB+4,4)}, {vr(PD[e]+4,4)}, {vr(OO[e],16)}")
        a(f"v_mfma_f32_32x32x16_bf16 {vr(OO[e],16)}, {vr(VHB,4)}, {vr(PP[e],4)}, {vr(OO[e],16)}")
    for k in range(4): a(f"v_cvt_pk_bf16_f32 v{QB+k}, v{OO[0]+2*k}, v{OO[0]+2*k+1}")
    a(f"buffer_store_dwordx4 {vr(QB,4)}, v12, {sr(S_WS)}, s{S_T0} offen sc1")
    a("s_nop 6")
    for k in range(4): a(f"v_cvt_pk_bf16_f32 v{QB+4+k}, v{OO[1]+8+2*k}, v{OO[1]+8+2*k+1}")
    a(f"buffer_store_dwordx4 {vr(QB+4,4)}, v12, {sr(S_WS)}, s{S_T0} offen offset:1024 sc1")

    NM = (16, 32); O = (48, 64); S = (128, 144); RING = 160; AQ = (AQ0, AQ1)
    def kv(t): b = RING + 12 * (t % 4); return b, b + 4, b + 8
    a(f"""
L_attn_setup:
s_and_b32 s{S_T0}, s{S_WAVE}, 3
s_lshl_b32 s{S_T1}, s{S_HG}, 2
s_add_u32 s{S_T0}, s{S_T0}, s{S_T1}
s_lshl_b32 s{S_T0}, s{S_T0}, 1
s_lshr_b32 s{S_T1}, s{S_WAVE}, 2
s_add_u32 s{S_T0}, s{S_T0}, s{S_T1}
s_lshl_b32 s{S_T0}, s{S_T0}, 16
v_lshlrev_b32 v3, 4, v1
v_add_u32 v3, s{S_T0}, v3
v_and_b32 v4, 15, v1
v_lshlrev_b32 v4, 4, v4
v_lshrrev_b32 v7, 5, v1
v_lshl_add_u32 v4, v7, 8, v4
v_add_u32 v4, s{S_T0}, v4
v_mov_b32 v2, 0xdddd
s_lshl_b32 s{S_T0}, s{S_HG}, 5
s_lshl_b32 s{S_T1}, s{S_T1}, 4
s_add_u32 s{S_T0}, s{S_T0}, s{S_T1}
s_lshl_b32 s{S_T0}, s{S_T0}, 7
s_add_u32 s{S_T0}, s{S_T0}, {FL_KV}
v_lshlrev_b32 v8, 7, v1
v_add_u32 v8, s{S_T0}, v8
""")
    for t in range(4):
        for k in range(8): a(f"v_mov_b32 v{kv(t)[1]+k}, 0x3f803f80")
    stamp(6)
    poll(8, 16, S_WS, tmp=7)
    stamp(7)
    a("L_attn_start:")
    def ld(t):
        k, v0_, v1_ = kv(t); off = (t % 2) * 2048
        L = [f"buffer_load_dwordx4 {vr(k,4)}, v3, {sr(S_WS)}, s{S_OFF} offen offset:{off} sc1",
             f"s_mov_b64 exec, {sr(S_MASK,2)}",
             f"buffer_load_dwordx4 {vr(v0_,4)}, v4, {sr(S_WS)}, s{S_OFF} offen offset:{off+1024} sc1",
             f"buffer_load_dwordx4 {vr(v1_,4)}, v4, {sr(S_WS)}, s{S_OFF} offen offset:{off+1536} sc1",
             "s_mov_b64 exec, -1"]
        if t % 2 == 1: L += [f"s_add_u32 s{S_OFF}, s{S_OFF}, 4096", f"s_bitset0_b32 s{S_OFF}, 16"]
        return L
    a(f"s_and_b32 s{S_OFF}, s{S_RB}, 15\ns_lshl_b32 s{S_OFF}, s{S_OFF}, 12")
    for t in range(3):
        for x in ld(t): a(x)
    a(f"""
s_mov_b32 s{S_CUR}, s{S_WOB}
s_mov_b32 s{S_CUR+1}, s{S_WOB+1}
s_mov_b32 s{S_CUR+2}, s{S_WOB+2}
s_mov_b32 s{S_CUR+3}, 0x00020000
s_lshl_b32 s{S_PM0}, s{S_WAVE}, 11
s_lshl_b32 s{S_PSO}, s{S_WAVE}, 14
s_lshl_b32 s{S_T0}, s{S_NB}, 7
s_add_u32 s{S_PSO}, s{S_PSO}, s{S_T0}
s_mov_b32 s{S_PSTEP}, 0x20000
v_bfe_u32 v5, v1, 4, 1
v_lshlrev_b32 v5, 2, v5
v_and_b32 v6, 7, v1
v_xor_b32 v5, v5, v6
v_lshlrev_b32 v5, 4, v5
v_lshrrev_b32 v6, 3, v1
v_lshl_add_u32 v5, v6, 10, v5
v_add_u32 v6, 7168, v5
v_mov_b32 v9, v5
v_mov_b32 v10, v6
s_mov_b32 s{S_IT}, 0
""")
    for q in range(2):
        for k in range(16): a(f"v_mov_b32 v{NM[q]+k}, v{AM+q}")
        for k in range(9): a(f"v_mov_b32 v{O[q]+k}, 0")
    for k in range(8): a(f"v_mov_b32 v{S[1]+8+k}, 0")
    lp = a.lab()
    a(f"s_cmp_ge_u32 s{S_WAVE}, 4\ns_cbranch_scc1 {lp}\ns_setprio 2\ns_branch {lp}b\n{lp}:\ns_setprio 1\n{lp}b:")
    a("s_waitcnt vmcnt(6)")
    a(f"v_mfma_f32_32x32x16_bf16 {vr(S[0],16)}, {vr(kv(0)[0],4)}, {vr(AQ[0],4)}, {vr(NM[0],16)}")
    a("s_nop 11")
    stamp(8)
    a(".p2align 3")
    a("L_attn_loop:")
    for u in range(8):
        t, q = u // 2, u % 2
        c = S[u % 2]; o = S[(u + 1) % 2]
        tp, qp = (u - 1) // 2, (u - 1) % 2
        tn, qn = (u + 1) // 2, (u + 1) % 2
        e = lambda i: a(f"v_exp_f32 v{c+i}, v{c+i}")
        e(0); e(1)
        a(f"v_smfmac_f32_32x32x32_bf16 {vr(O[qp],16)}, {vr(kv(tp)[2],4)}, {vr(o+8,8)}, v2")
        if q == 0:
            for x in ld(t + 3): a(x)
            if t == 0:
                a(f"s_mov_b32 m0, s{S_PM0}")
                a(f"s_add_u32 s{S_PM0}, s{S_PM0}, 16384")
                a(f"buffer_load_dwordx4 v5, {sr(S_CUR)}, s{S_PSO} offen sc1 lds")
                a(f"buffer_load_dwordx4 v6, {sr(S_CUR)}, s{S_PSO} offen offset:1024 sc1 lds")
                a(f"s_add_u32 s{S_PSO}, s{S_PSO}, s{S_PSTEP}")
        e(2); e(3)
        if q == 1: a(f"s_waitcnt vmcnt({6 if t == 3 else 8})")
        e(4)
        a(f"v_mfma_f32_32x32x16_bf16 {vr(o,16)}, {vr(kv(tn)[0],4)}, {vr(AQ[qn],4)}, {vr(NM[qn],16)}")
        for i in range(5, 11): e(i)
        a(f"v_smfmac_f32_32x32x32_bf16 {vr(O[q],16)}, {vr(kv(t)[1],4)}, {vr(c,8)}, v2")
        for i in range(11, 16): e(i)
    evs = sorted(set([cfg.ob_iter, 4, cfg.prio_iter, 8]))
    bits = sum(1 << k for k in evs)
    a(f"s_add_u32 s{S_IT}, s{S_IT}, 1")
    a(f"s_bitcmp0_b32 {bits}, s{S_IT}")
    a("s_cbranch_scc1 L_attn_loop")
    a(f"s_cmp_eq_u32 s{S_IT}, 8\ns_cbranch_scc1 L_attn_done")
    l1, l2, l3 = a.lab(), a.lab(), a.lab()
    a(f"""
s_cmp_ge_u32 s{S_WAVE}, 4
s_cbranch_scc1 {l2}
s_cmp_lg_u32 s{S_IT}, {cfg.ob_iter}
s_cbranch_scc1 {l1}
s_lshl_b32 s{S_T0}, s{S_RBB}, 3
s_add_u32 s{S_T0}, s{S_T0}, s{S_HGB}
s_lshl_b32 s{S_T0}, s{S_T0}, 5
s_add_u32 s{S_T0}, s{S_T0}, s{S_WAVE}
s_lshl_b32 s{S_T0}, s{S_T0}, 2
s_add_u32 s{S_T0}, s{S_T0}, {FL_OB}
v_mov_b32 v7, 1
v_mov_b32 v8, 0
s_waitcnt vmcnt(0)
s_mov_b64 exec, 1
buffer_store_dword v7, v8, {sr(S_WS)}, s{S_T0} offen sc1
s_mov_b64 exec, -1
{l1}:
s_cmp_lg_u32 s{S_IT}, {cfg.prio_iter}
s_cbranch_scc1 {l2}
s_setprio 0
{l2}:
s_cmp_lg_u32 s{S_IT}, 4
s_cbranch_scc1 L_attn_loop
s_lshl_b32 s{S_T0}, s{S_RBO}, 10
s_add_u32 s{S_T0}, s{S_T0}, {FL_OB}
v_lshrrev_b32 v8, 2, v1
v_lshlrev_b32 v8, 7, v8
v_and_b32 v7, 3, v1
v_lshl_add_u32 v8, v7, 2, v8
v_add_u32 v8, s{S_T0}, v8
""")
    poll(8, 32, S_WS, tmp=7)
    a(f"""
s_mov_b32 s{S_CUR}, s{S_WS}
s_mov_b32 s{S_CUR+1}, s{S_WS+1}
s_mov_b32 s{S_CUR+2}, s{S_WS+2}
s_lshl_b32 s{S_PSO}, s{S_RBO}, 16
s_lshl_b32 s{S_T0}, s{S_WAVE}, 11
s_add_u32 s{S_PSO}, s{S_PSO}, s{S_T0}
s_add_u32 s{S_PSO}, s{S_PSO}, {WS_OB}
s_mov_b32 s{S_PSTEP}, 16384
v_lshlrev_b32 v5, 4, v1
v_lshlrev_b32 v6, 4, v1
s_branch L_attn_loop
L_attn_done:
s_setprio 0
v_smfmac_f32_32x32x32_bf16 {vr(O[1],16)}, {vr(kv(3)[2],4)}, {vr(S[1]+8,8)}, v2
""")
    stamp(9)
    thr = f32(2.0**40) if not cfg.force_fallback else f32(2.0**-3)
    a(f"""
s_and_b32 s{S_T0}, s{S_WAVE}, 3
s_mul_i32 s{S_T0}, s{S_T0}, 4608
s_add_u32 s{S_T0}, s{S_T0}, {L_CB}
v_lshlrev_b32 v11, 4, v1
v_add_u32 v11, s{S_T0}, v11
v_lshlrev_b32 v12, 2, v1
v_add_u32 v12, s{S_T0}, v12
s_lshl_b32 s{S_T1}, s{S_WAVE}, 2
s_add_u32 s{S_T1}, s{S_T1}, {L_FB}
v_mov_b32 v13, s{S_T1}
v_and_b32 v14, 7, v1
v_lshlrev_b32 v14, 2, v14
v_add_u32 v14, {L_FB}, v14
s_mov_b32 s{S_T2}, {thr}
v_max3_f32 v7, |v{O[0]}|, |v{O[0]+1}|, |v{O[0]+2}|
v_max3_f32 v7, v7, |v{O[0]+3}|, |v{O[0]+4}|
v_max3_f32 v7, v7, |v{O[0]+5}|, |v{O[0]+6}|
v_max3_f32 v7, v7, |v{O[0]+7}|, |v{O[1]}|
v_max3_f32 v7, v7, |v{O[1]+1}|, |v{O[1]+2}|
v_max3_f32 v7, v7, |v{O[1]+3}|, |v{O[1]+4}|
v_max3_f32 v7, v7, |v{O[1]+5}|, |v{O[1]+6}|
v_max_f32 v7, v7, |v{O[1]+7}|
v_mul_f32 v7, {f32(2.0**-80)}, v7
v_max3_f32 v7, v7, v{O[0]+8}, v{O[1]+8}
v_cmp_nlt_f32 vcc, v7, s{S_T2}
s_nop 1
s_cmp_lg_u64 vcc, 0
s_cselect_b32 s{S_T1}, 1, 0
v_mov_b32 v7, s{S_T1}
ds_write_b32 v13, v7
s_cmp_lt_u32 s{S_WAVE}, 4
s_cbranch_scc1 L_cmb1
ds_write_b128 v11, {vr(O[0],4)}
ds_write_b128 v11, {vr(O[0]+4,4)} offset:1024
ds_write_b128 v11, {vr(O[1],4)} offset:2048
ds_write_b128 v11, {vr(O[1]+4,4)} offset:3072
ds_write_b32 v12, v{O[0]+8} offset:4096
ds_write_b32 v12, v{O[1]+8} offset:4352
L_cmb1:
s_waitcnt vmcnt(0) lgkmcnt(0)
s_barrier
ds_read_b32 v7, v14
s_cmp_ge_u32 s{S_WAVE}, 4
s_cbranch_scc1 L_cmb2
ds_read_b128 {vr(128,4)}, v11
ds_read_b128 {vr(132,4)}, v11 offset:1024
ds_read_b128 {vr(136,4)}, v11 offset:2048
ds_read_b128 {vr(140,4)}, v11 offset:3072
ds_read_b32 v144, v12 offset:4096
ds_read_b32 v145, v12 offset:4352
L_cmb2:
s_waitcnt lgkmcnt(0)
v_cmp_ne_u32 vcc, 0, v7
s_nop 1
s_cmp_lg_u64 vcc, 0
s_cselect_b32 s{S_T1}, 1, 0
s_andn2_b32 s{S_T1}, s{S_T1}, s{S_PASS}
s_cbranch_scc1 L_fallback
""")
    stamp(10)
    def oproj_addr():
        a(f"""
s_and_b32 s{S_T0}, s{S_WAVE}, 1
s_bfe_u32 s{S_T1}, s{S_WAVE}, 0x10001
v_lshrrev_b32 v15, 5, v1             ; h
v_bfe_u32 v16, v1, 2, 2              ; r4
v_lshl_add_u32 v17, v15, 2, v16      ; 4h + r4
v_and_b32 v18, 1, v1
v_lshlrev_b32 v18, 5, v18            ; 32B * (c4&1)
v_bfe_u32 v19, v1, 4, 1
v_lshl_add_u32 v18, v19, 4, v18      ; + 16B * g'
v_bfe_u32 v19, v1, 1, 1
v_lshl_add_u32 v18, v19, 3, v18      ; + 8B * (c4>>1)
v_bfe_u32 v19, v1, 3, 1
v_xor_b32 v19, s{S_T1}, v19
v_lshl_add_u32 v18, v19, 6, v18
v_lshl_add_u32 v20, v17, 7, v18
s_lshl_b32 s{S_T2}, s{S_T0}, 15
s_add_u32 s{S_T2}, s{S_T2}, {L_O}
v_lshlrev_b32 v21, 4, v1
v_add_u32 v21, s{S_T2}, v21
v_and_b32 v22, 31, v1
""")
    def oproj_store(acc):
        for k in range(8): a(f"v_cvt_pk_bf16_f32 v{24+k}, v{acc+2*k}, v{acc+2*k+1}")
        a(f"buffer_store_dwordx4 {vr(24,4)}, v22, {sr(S_OUT)}, s{S_T3} offen")
        a(f"buffer_store_dwordx4 {vr(28,4)}, v22, {sr(S_OUT)}, s{S_T3} offen offset:16")
    def oa_fetch():
        a(f"""
s_lshl_b32 s{S_T0}, s{S_RBO}, 3
s_add_u32 s{S_T0}, s{S_T0}, s{S_WAVE}
s_lshl_b32 s{S_T0}, s{S_T0}, 7
s_add_u32 s{S_T0}, s{S_T0}, {FL_OA}
v_lshlrev_b32 v8, 2, v1
v_add_u32 v8, s{S_T0}, v8
v_lshlrev_b32 v5, 4, v1
s_lshl_b32 s{S_PM0}, s{S_WAVE}, 12
s_lshl_b32 s{S_PSO}, s{S_RBO}, 16
s_add_u32 s{S_PSO}, s{S_PSO}, s{S_PM0}
s_add_u32 s{S_PSO}, s{S_PSO}, {WS_OA}
s_add_u32 s{S_T1}, s{S_PSO}, 32768
""")
        poll(8, 4, S_WS, tmp=7)
        stamp(13)
        for s in range(4):
            a(f"s_add_u32 m0, s{S_PM0}, {L_O}\ns_nop 0")
            a(f"buffer_load_dwordx4 v5, {sr(S_WS)}, s{S_PSO} offen offset:{s*1024} sc1 lds")
            a(f"s_add_u32 m0, s{S_PM0}, {L_O + 32768}\ns_nop 0")
            a(f"buffer_load_dwordx4 v5, {sr(S_WS)}, s{S_T1} offen offset:{s*1024} sc1 lds")

    a(f"s_cmp_ge_u32 s{S_WAVE}, 4\ns_cbranch_scc1 L_oprojB")
    a(f"""
v_add_f32 v144, v144, v{O[0]+8}
v_add_f32 v145, v145, v{O[1]+8}
v_rcp_f32 v144, v144
v_rcp_f32 v145, v145
s_lshl_b32 s{S_T0}, s{S_RB}, 6
s_lshl_b32 s{S_T1}, s{S_HG}, 2
s_add_u32 s{S_T0}, s{S_T0}, s{S_T1}
s_add_u32 s{S_T0}, s{S_T0}, s{S_WAVE}
s_lshl_b32 s{S_T0}, s{S_T0}, 10
s_add_u32 s{S_T0}, s{S_T0}, {WS_OA}
s_add_u32 s{S_T1}, s{S_T0}, 32768
v_lshlrev_b32 v12, 4, v1
""")
    for q in range(2):
        for k in range(8): a(f"v_add_f32 v{128+8*q+k}, v{128+8*q+k}, v{O[q]+k}")
        for k in range(8): a(f"v_mul_f32 v{128+8*q+k}, v{128+8*q+k}, v{144+q}")
        for k in range(4): a(f"v_cvt_pk_bf16_f32 v{148+4*q+k}, v{128+8*q+2*k}, v{128+8*q+2*k+1}")
        a(f"buffer_store_dwordx4 {vr(148+4*q,4)}, v12, {sr(S_WS)}, s{S_T0 if q == 0 else S_T1} offen sc1")
    oproj_addr()
    a(f"""
v_lshlrev_b32 v22, 11, v22
v_lshl_add_u32 v22, v15, 5, v22
s_lshl_b32 s{S_T3}, s{S_RBO}, 17
s_lshl_b32 s{S_T0}, s{S_T0}, 16
s_add_u32 s{S_T3}, s{S_T3}, s{S_T0}
s_lshl_b32 s{S_T1}, s{S_T1}, 6
s_add_u32 s{S_T3}, s{S_T3}, s{S_T1}
s_lshl_b32 s{S_T1}, s{S_NB}, 7
s_add_u32 s{S_T3}, s{S_T3}, s{S_T1}
s_lshl_b32 s{S_T0}, s{S_RB}, 3
s_add_u32 s{S_T0}, s{S_T0}, s{S_HG}
s_lshl_b32 s{S_T0}, s{S_T0}, 5
s_add_u32 s{S_T0}, s{S_T0}, s{S_WAVE}
s_lshl_b32 s{S_T0}, s{S_T0}, 2
s_add_u32 s{S_T0}, s{S_T0}, {FL_OA}
v_mov_b32 v7, 1
v_mov_b32 v8, 0
s_barrier
s_waitcnt vmcnt(0)
s_mov_b64 exec, 1
buffer_store_dword v7, v8, {sr(S_WS)}, s{S_T0} offen sc1
s_mov_b64 exec, -1
""")
    stamp(11)
    a("s_barrier")
    WF = 128
    for k in range(32):
        a(f"ds_read_b64_tr_b16 {vr(WF+4*k,2)}, v20 offset:{L_WO + k*2048}")
        a(f"ds_read_b64_tr_b16 {vr(WF+4*k+2,2)}, v20 offset:{L_WO + k*2048 + 1024}")
    a("s_waitcnt lgkmcnt(0)")
    stamp(12)
    oa_fetch()
    ACC = 32; OF = 64
    for s in range(4):
        a(f"s_waitcnt vmcnt({6 - 2*s})\ns_barrier")
        buf = OF + 32 * (s % 2)
        for w in range(8): a(f"ds_read_b128 {vr(buf+4*w,4)}, v21 offset:{(4*w+s)*1024}")
        for w in range(8):
            a(f"s_waitcnt lgkmcnt({7-w})")
            a(f"v_mfma_f32_32x32x16_bf16 {vr(ACC,16)}, {vr(WF+4*(4*w+s),4)}, {vr(buf+4*w,4)}, {vr(ACC,16) if (s or w) else 0}")
    a("s_nop 11")
    oproj_store(ACC)
    stamp(14)
    a("s_branch L_end")

    a("L_oprojB:")
    oproj_addr()
    a(f"""
v_lshlrev_b32 v22, 12, v22
v_lshl_add_u32 v22, v15, 5, v22
s_lshl_b32 s{S_T3}, s{S_RBO}, 17
s_lshl_b32 s{S_T0}, s{S_T0}, 11
s_add_u32 s{S_T3}, s{S_T3}, s{S_T0}
s_lshl_b32 s{S_T1}, s{S_T1}, 6
s_add_u32 s{S_T3}, s{S_T3}, s{S_T1}
s_lshl_b32 s{S_T1}, s{S_NB}, 7
s_add_u32 s{S_T3}, s{S_T3}, s{S_T1}
s_add_u32 s{S_T3}, s{S_T3}, 1024
""")
    def brd(k):
        b = 64 + 8 * (k % 5)
        a(f"ds_read_b64_tr_b16 {vr(b,2)}, v20 offset:{L_WO + k*2048}")
        a(f"ds_read_b64_tr_b16 {vr(b+2,2)}, v20 offset:{L_WO + k*2048 + 1024}")
        a(f"ds_read_b128 {vr(b+4,4)}, v21 offset:{k*1024}")
    for k in range(4): brd(k)
    for k in range(32):
        if k + 4 < 32: brd(k + 4)
        left = min(4, 31 - k)
        a(f"s_waitcnt lgkmcnt({3*left})")
        if k == 31: a("s_barrier")
        b = 64 + 8 * (k % 5)
        a(f"v_mfma_f32_32x32x16_bf16 {vr(ACC,16)}, {vr(b,4)}, {vr(b+4,4)}, {vr(ACC,16) if k else 0}")
    a(f"""
s_sub_u32 s{S_T0}, s{S_WAVE}, 4
s_lshl_b32 s{S_PM0}, s{S_T0}, 11
s_lshl_b32 s{S_PSO}, s{S_T0}, 14
s_lshl_b32 s{S_T0}, s{S_NB}, 7
s_add_u32 s{S_PSO}, s{S_PSO}, s{S_T0}
""")
    for i in range(8):
        a(f"s_add_u32 m0, s{S_PM0}, {L_WO + i*8192}")
        a(f"s_add_u32 s{S_T0}, s{S_PSO}, {i*65536}")
        a(f"buffer_load_dwordx4 v9, {sr(S_WOA)}, s{S_T0} offen lds")
        a(f"buffer_load_dwordx4 v10, {sr(S_WOA)}, s{S_T0} offen offset:1024 lds")
    oproj_store(ACC)
    stamp(11)
    a("s_waitcnt vmcnt(2)\ns_barrier")
    stamp(12)
    oa_fetch()
    for s in range(4): a(f"s_waitcnt vmcnt({6 - 2*s})\ns_barrier")
    stamp(14)
    a("L_end:")
    if cfg.stamps:
        a(f"s_waitcnt vmcnt(0)\ns_memtime s[90:91]\ns_memrealtime s[96:97]\ns_waitcnt lgkmcnt(0)\ns_mov_b32 s{S_STAMP+15}, s90")
        a(f"s_mov_b32 s{S_STAMP+16}, s94\ns_mov_b32 s{S_STAMP+17}, s92\ns_mov_b32 s{S_STAMP+18}, s96\ns_getreg_b32 s{S_STAMP+19}, hwreg(HW_REG_XCC_ID)")
        a(f"s_lshl_b32 s{S_T0}, s2, 3\ns_add_u32 s{S_T0}, s{S_T0}, s{S_WAVE}\ns_lshl_b32 s{S_T0}, s{S_T0}, 7\ns_add_u32 s{S_T0}, s{S_T0}, {WS_ST}")
        a("v_mov_b32 v8, 0\ns_mov_b64 exec, 1")
        for i in range(5):
            for k in range(4): a(f"v_mov_b32 v{12+k}, s{S_STAMP+4*i+k}")
            a(f"buffer_store_dwordx4 v[12:15], v8, {sr(S_WS)}, s{S_T0} offen offset:{16*i}\ns_nop 1")
    a("L_exit:\ns_endpgm")

    a(f"""
L_fallback:
s_mov_b32 s{S_PASS}, 1
s_mov_b32 s{S_OFF}, 0
v_mov_b32 v{AM}, 0xff800000
v_mov_b32 v{AM+1}, 0xff800000
L_fb_loop:
buffer_load_dwordx4 {vr(RING,4)}, v3, {sr(S_WS)}, s{S_OFF} offen sc1
s_waitcnt vmcnt(0)
v_mfma_f32_32x32x16_bf16 {vr(S[0],16)}, {vr(RING,4)}, {vr(AQ[0],4)}, 0
v_mfma_f32_32x32x16_bf16 {vr(S[1],16)}, {vr(RING,4)}, {vr(AQ[1],4)}, 0
s_nop 15
""")
    for q in range(2):
        for i in range(0, 16, 2): a(f"v_max3_f32 v{AM+q}, v{AM+q}, v{S[q]+i}, v{S[q]+i+1}")
    a(f"""
s_add_u32 s{S_OFF}, s{S_OFF}, 2048
s_cmp_lt_u32 s{S_OFF}, 65536
s_cbranch_scc1 L_fb_loop
v_mov_b32 v7, v{AM}
v_mov_b32 v8, v{AM+1}
s_nop 1
v_permlane32_swap_b32 v{AM}, v7
v_permlane32_swap_b32 v{AM+1}, v8
s_nop 1
v_max_f32 v{AM}, v{AM}, v7
v_max_f32 v{AM+1}, v{AM+1}, v8
s_lshl_b32 s{S_T0}, s{S_WAVE}, 9
s_add_u32 s{S_T0}, s{S_T0}, {L_FB + 256}
v_lshlrev_b32 v11, 2, v1
v_add_u32 v11, s{S_T0}, v11
s_xor_b32 s{S_T0}, s{S_WAVE}, 4
s_lshl_b32 s{S_T0}, s{S_T0}, 9
s_add_u32 s{S_T0}, s{S_T0}, {L_FB + 256}
v_lshlrev_b32 v12, 2, v1
v_add_u32 v12, s{S_T0}, v12
ds_write_b32 v11, v{AM}
ds_write_b32 v11, v{AM+1} offset:256
s_waitcnt lgkmcnt(0)
s_barrier
ds_read_b32 v7, v12
ds_read_b32 v8, v12 offset:256
s_waitcnt lgkmcnt(0)
v_max_f32 v{AM}, v{AM}, v7
v_max_f32 v{AM+1}, v{AM+1}, v8
v_sub_f32 v{AM}, 0, v{AM}
v_sub_f32 v{AM+1}, 0, v{AM+1}
s_branch L_attn_start
""")
    head = open("cdna_kernels/" + NAME + ".s.ref").read().split("\n")
    top = [l for l in head if l.startswith(";") and "@launch" not in l and not l.startswith("; Override") and not l.startswith("; grid=")]
    out = "\n".join(top) + f"""
; @launch grid=(256,1,1) block=(512,1,1) lds={LDS_BYTES}
.amdgcn_target "amdgcn-amd-amdhsa--gfx950"
.text
.globl {NAME}_kernel
.p2align 8
.type {NAME}_kernel,@function
{NAME}_kernel:
""" + a.text() + f""".section .rodata,"a"
.p2align 6
.amdhsa_kernel {NAME}_kernel
  .amdhsa_next_free_vgpr 256
  .amdhsa_next_free_sgpr 102
  .amdhsa_accum_offset 256
  .amdhsa_group_segment_fixed_size 0
  .amdhsa_kernarg_size 72
  .amdhsa_user_sgpr_count 2
  .amdhsa_user_sgpr_kernarg_segment_ptr 1
  .amdhsa_system_sgpr_workgroup_id_x 1
.end_amdhsa_kernel
"""
    return out

if __name__ == "__main__":
    cfg = Cfg()
    outp = "cdna_kernels/" + NAME + ".s"
    for arg in sys.argv[1:]:
        if arg.startswith("-o"): outp = arg[2:]
        else:
            k, v = arg.split("="); setattr(cfg, k, type(getattr(Cfg, k))(int(v)))
    open(outp, "w").write(gen(cfg))
    print("wrote", outp)
```

```python
import sys, math, struct

NAME = "concat_heads__softmax_full_mha__sliding_local_dilated__prompt"

class Cfg:
    stamps = False
    flag_stage = 2
    ob_iter = 2
    prio_iter = 5
    force_fallback = False
    spin = 400000
    probe = -2
    probe_hi = 0
    memtest = 0

def f32(x): return "0x%08x" % struct.unpack("<I", struct.pack("<f", x))[0]

WS_KV = 0
WS_OA = 4 << 20
WS_OB = 6 << 20
WS_FL = 8 << 20
FL_KV = WS_FL
FL_OB = WS_FL + 256 * 128
FL_OA = WS_FL + 512 * 128
WS_ST = WS_FL + 768 * 128
WS_SIZE = WS_ST + 256 * 8 * 128

NX, NW = 6, 12
L_X = 0
L_H = 49152
L_W = 65536
L_QX = 32768
L_MX = L_QX + 8192
L_WO = 0
L_O = 65536
L_CB = 131072
L_FB = L_CB + 18432
LDS_BYTES = 163840

S_XA, S_WA, S_WOA, S_XB, S_WB, S_WOB, S_OUT, S_DBG, S_WS = 24, 28, 32, 36, 40, 44, 48, 52, 56
S_WAVE, S_RB, S_HG, S_RBB, S_HGB, S_RBO, S_NB = 60, 61, 62, 63, 64, 65, 66
S_T0, S_T1, S_T2, S_T3 = 67, 68, 69, 70
S_LB = 71
S_BXA, S_BWA, S_BXB, S_BWB = 72, 73, 74, 75
S_CUR = 76
S_MASK = 80
S_OFF, S_IT, S_PM0, S_PSO, S_PSTEP, S_PASS, S_SPIN, S_C = 82, 83, 84, 85, 86, 87, 88, 89
S_HM = 100
S_STAMP = 4

class Asm:
    def __init__(self): self.L = []; self.nlab = 0
    def __call__(self, s):
        for line in s.strip("\n").split("\n"):
            line = line.strip()
            if not line: continue
            if line.endswith(":") or line.startswith(";") or line.startswith("."): self.L.append(line)
            else: self.L.append("    " + line)
    def lab(self, p="L"):
        self.nlab += 1; return f"{p}_{self.nlab}"
    def text(self): return "\n".join(self.L) + "\n"

def vr(a, n): return f"v[{a}:{a+n-1}]"
def sr(a, n=4): return f"s[{a}:{a+n-1}]"

class Filler:
    def __init__(self): self.q = []; self.wait = 0
    def add(self, *items):
        for it in items:
            if isinstance(it, str):
                self.q += [x.strip() for x in it.strip().split("\n") if x.strip()]
            else: self.q.append(it)
    def tick(self, n=1): self.wait = max(0, self.wait - n)
    def take(self, a, k):
        while k > 0 and self.q:
            if isinstance(self.q[0], int):
                self.wait = max(self.wait, self.q.pop(0)); continue
            if self.wait > 0: return
            a(self.q.pop(0)); k -= 1
    def flush(self, a):
        while self.q:
            if isinstance(self.q[0], int):
                self.wait = max(self.wait, self.q.pop(0)); continue
            while self.wait > 0:
                n = min(self.wait, 16); a(f"s_nop {n-1}"); self.wait -= n
            a(self.q.pop(0))

def gen(cfg):
    a = Asm()
    nst = [0]
    def stamp(i):
        if cfg.probe == i:
            a(f"s_memrealtime s[90:91]\ns_waitcnt lgkmcnt(0)\ns_mov_b32 s4, s90")
        if cfg.stamps:
            a(f"s_memtime s[90:91]\ns_waitcnt lgkmcnt(0)\ns_mov_b32 s{S_STAMP+i}, s90")
    def srd(d, base, nbytes):
        a(f"s_mov_b32 s{d}, s{base}\ns_mov_b32 s{d+1}, s{base+1}\ns_mov_b32 s{d+2}, {hex(nbytes)}\ns_mov_b32 s{d+3}, 0x00020000")
    def poll(voff, nlanes, srdi, wide=False, tmp=None):
        lp, dn = a.lab("L_poll"), a.lab("L_pdone")
        if nlanes < 32: a(f"s_mov_b64 exec, {hex((1 << nlanes) - 1)}")
        else: a("s_mov_b32 exec_hi, 0")
        a(f"s_mov_b32 s{S_SPIN}, {cfg.spin}")
        a(f"{lp}:")
        a(f"buffer_load_dword v{tmp}, v{voff}, {sr(srdi)}, 0 offen sc1")
        a(f"s_waitcnt vmcnt(0)")
        a(f"v_cmp_ne_u32 vcc, 1, v{tmp}")
        a(f"s_cbranch_vccz {dn}")
        a(f"s_sub_u32 s{S_SPIN}, s{S_SPIN}, 1\ns_cmp_lg_u32 s{S_SPIN}, 0\ns_cbranch_scc1 {lp}")
        a(f"{dn}:")
        a("s_mov_b64 exec, -1")

    xp = [("A", s) for s in range(8)] + [("B", s) for s in range(8)]
    wp = []
    for s in range(8): wp += [("A", 1, s), ("A", 2, s)]
    for s in range(8): wp += [("A", 0, s)]
    for s in range(8): wp += [("B", 0, s), ("B", 1, s), ("B", 2, s)]
    xslot = {p: i % NX for i, p in enumerate(xp)}
    wslot = {p: i % NW for i, p in enumerate(wp)}
    stages = []
    for s in range(8): stages.append(dict(n=f"KV{s}", x=[("A", s)], w=[("A", 1, s), ("A", 2, s)], h=False))
    for s in range(4): stages.append(dict(n=f"Q{s}", x=[], w=[("A", 0, 2*s), ("A", 0, 2*s+1)], h=False))
    for s in range(8): stages.append(dict(n=f"B{s}", x=[("B", s)], w=[("B", 0, s), ("B", 1, s), ("B", 2, s)], h=(s == 0)))

    a(f"""
s_cmp_ge_u32 s2, 256
s_cbranch_scc1 L_exit
s_load_dwordx16 s[4:19], s[0:1], 0
s_load_dwordx2 s[20:21], s[0:1], 64
""")
    if cfg.stamps:
        a("s_memrealtime s[92:93]\ns_memtime s[94:95]")
    elif cfg.probe >= -1:
        a("s_memrealtime s[92:93]")
    if cfg.memtest:
        a("s_waitcnt lgkmcnt(0)")
        srd(S_XA, 4, 2 << 20); srd(S_XB, 10, 2 << 20); srd(S_WA, 6, 3 << 19); srd(S_WB, 12, 3 << 19)
        a("s_mov_b32 s22, s4\ns_mov_b32 s23, s5")
        stamp(20)
        a("v_lshlrev_b32 v2, 4, v0\ns_lshl_b32 s67, s2, 13")
        if cfg.memtest >= 1: a(f"buffer_load_dwordx4 v[4:7], v2, {sr(S_XA)}, s67 offen")
        if cfg.memtest >= 2: a(f"buffer_load_dwordx4 v[8:11], v2, {sr(S_XB)}, s67 offen")
        if cfg.memtest >= 3: a(f"buffer_load_dwordx4 v[12:15], v2, {sr(S_WA)}, s67 offen\nbuffer_load_dwordx4 v[16:19], v2, {sr(S_WB)}, s67 offen")
        a("s_waitcnt vmcnt(0)\ns_barrier")
        stamp(21)
        a("s_mov_b32 s101, s4\ns_mov_b32 s4, s22")
    a(f"""
v_lshrrev_b32 v2, 6, v0
v_and_b32 v1, 63, v0
v_readfirstlane_b32 s{S_WAVE}, v2
s_and_b32 s{S_T0}, s2, 7
s_lshr_b32 s{S_T1}, s2, 3
s_and_b32 s{S_HG}, s{S_T0}, 3
s_lshl_b32 s{S_HG}, s{S_HG}, 1
s_and_b32 s{S_T2}, s{S_T1}, 1
s_or_b32 s{S_HG}, s{S_HG}, s{S_T2}
s_lshr_b32 s{S_RB}, s{S_T0}, 2
s_lshl_b32 s{S_RB}, s{S_RB}, 4
s_lshr_b32 s{S_T2}, s{S_T1}, 1
s_or_b32 s{S_RB}, s{S_RB}, s{S_T2}
s_and_b32 s{S_HGB}, s{S_T0}, 1
s_lshl_b32 s{S_HGB}, s{S_HGB}, 2
s_and_b32 s{S_T2}, s{S_T1}, 3
s_or_b32 s{S_HGB}, s{S_HGB}, s{S_T2}
s_lshr_b32 s{S_RBB}, s{S_T0}, 1
s_lshl_b32 s{S_RBB}, s{S_RBB}, 3
s_lshr_b32 s{S_T2}, s{S_T1}, 2
s_or_b32 s{S_RBB}, s{S_RBB}, s{S_T2}
s_lshl_b32 s{S_RBO}, s{S_T0}, 2
s_lshr_b32 s{S_T2}, s{S_T1}, 3
s_or_b32 s{S_RBO}, s{S_RBO}, s{S_T2}
s_and_b32 s{S_NB}, s{S_T1}, 7
s_mov_b32 s{S_MASK}, 0xffff
s_mov_b32 s{S_MASK+1}, 0xffff
s_mov_b32 s{S_PASS}, 0
s_mov_b32 s{S_C}, {f32(0.25 * math.log2(math.e))}
s_cmp_lt_u32 s{S_WAVE}, 4
s_cbranch_scc1 L_compute
""")
    def all_srds(first):
        rest = [(S_XA, 4, 2 << 20), (S_WA, 6, 3 << 19), (S_WOA, 8, 1 << 19), (S_XB, 10, 2 << 20), (S_WB, 12, 3 << 19),
                (S_WOB, 14, 1 << 19), (S_OUT, 16, 4 << 20), (S_DBG, 18, 256), (S_WS, 20, WS_SIZE)]
        for d, b, n in rest:
            if (d in (S_XA, S_WA)) == first: srd(d, b, n)

    a(f"""
; ---------------- loader ----------------
s_sub_u32 s{S_T0}, s{S_WAVE}, 4
s_lshl_b32 s{S_LB}, s{S_T0}, 11
s_lshl_b32 s{S_T1}, s{S_T0}, 4
v_lshrrev_b32 v10, 3, v1
v_add_u32 v11, s{S_T1}, v10
v_and_b32 v12, 7, v1
v_lshrrev_b32 v13, 4, v1
v_xor_b32 v14, v12, v13
v_lshlrev_b32 v14, 4, v14
v_xor_b32 v15, 64, v14
v_lshl_add_u32 v2, v11, 10, v14
v_lshl_add_u32 v3, v11, 10, v15
v_add_u32 v3, 7168, v3
v_and_b32 v13, 1, v13
v_lshlrev_b32 v13, 2, v13
v_xor_b32 v13, v12, v13
v_lshlrev_b32 v13, 4, v13            ; W chunk
v_mul_u32_u24 v4, 3072, v11
v_add_u32 v4, v4, v13
v_add_u32 v5, {8*3072-1024}, v4
s_lshl_b32 s{S_BXA}, s{S_RB}, 16
s_lshl_b32 s{S_BWA}, s{S_HG}, 7
s_lshl_b32 s{S_BXB}, s{S_RBB}, 16
s_lshl_b32 s{S_BWB}, s{S_HGB}, 7
s_waitcnt lgkmcnt(0)
""")
    all_srds(True)
    issued = []
    def issue_x(p):
        br, s = p
        a(f"s_add_u32 m0, s{S_LB}, {L_X + xslot[p]*8192}")
        a(f"s_add_u32 s{S_T0}, s{S_BXA if br == 'A' else S_BXB}, {s*128}")
        v = 2 if br == "A" else 6; srdi = S_XA if br == "A" else S_XB
        a(f"buffer_load_dwordx4 v{v}, {sr(srdi)}, s{S_T0} offen lds")
        a(f"buffer_load_dwordx4 v{v+1}, {sr(srdi)}, s{S_T0} offen offset:1024 lds")
        issued.append((("x",) + p, 2))
    def issue_w(p):
        br, ty, s = p
        a(f"s_add_u32 m0, s{S_LB}, {L_W + wslot[p]*8192}")
        a(f"s_add_u32 s{S_T0}, s{S_BWA if br == 'A' else S_BWB}, {s*64*3072 + ty*1024}")
        srdi = S_WA if br == "A" else S_WB
        a(f"buffer_load_dwordx4 v4, {sr(srdi)}, s{S_T0} offen lds")
        a(f"buffer_load_dwordx4 v5, {sr(srdi)}, s{S_T0} offen offset:1024 lds")
        issued.append((("w",) + p, 2))
    def issue_h():
        for q in range(2):
            a(f"s_lshl_b32 s{S_T1}, s{S_LB}, 1")
            a(f"s_add_u32 m0, s{S_T1}, {L_H + q*2048}")
            a(f"s_lshr_b32 s{S_T0}, s{S_LB}, 3")
            a(f"s_add_u32 s{S_T0}, s{S_T0}, {q*128}")
            a(f"buffer_load_dwordx4 v8, {sr(S_XB)}, s{S_T0} offen lds")
            a(f"buffer_load_dwordx4 v8, {sr(S_XB)}, s{S_T0} offen offset:1024 lds")
        issued.append((("h",), 4))
    xi = wi = 0
    for s in range(6):
        issue_x(xp[xi]); xi += 1
        issue_w(wp[wi]); issue_w(wp[wi+1]); wi += 2
    all_srds(False)
    stamp(0)
    a(f"""
v_and_b32 v16, 31, v11
v_lshrrev_b32 v17, 5, v11
v_lshl_add_u32 v16, v16, 1, v17
v_lshl_add_u32 v6, v16, 10, v14
v_lshl_add_u32 v7, v16, 10, v15
v_add_u32 v7, {16*1024-1024}, v7
s_sub_u32 s{S_T0}, s{S_BXB}, 16384
s_cmp_eq_u32 s{S_RBB}, 0
s_cselect_b32 s{S_T0}, 0x80000000, s{S_T0}
v_lshl_add_u32 v8, v10, 11, v14
v_add_u32 v8, s{S_T0}, v8
""")
    def need_count(keys):
        last = max(i for i, (k, n) in enumerate(issued) if k in keys)
        return sum(n for k, n in issued[last+1:])
    for si, st in enumerate(stages):
        keys = [("x",) + p for p in st["x"]] + [("w",) + p for p in st["w"]] + ([("h",)] if st["h"] else [])
        a(f"s_waitcnt vmcnt({need_count(keys)})")
        if si == 0: stamp(1)
        a("s_barrier")
        if si > 0:
            pv = stages[si-1]
            nx, nw = len(pv["x"]), len(pv["w"])
            todo_w = wp[wi:wi+nw]; wi += len(todo_w)
            todo_x = xp[xi:xi+nx]; xi += len(todo_x)
            if todo_x and todo_x[0][0] == "A":
                for p in todo_x: issue_x(p)
                for p in todo_w: issue_w(p)
            else:
                for p in todo_w: issue_w(p)
                for p in todo_x: issue_x(p)
            if si == 3: issue_h()
    assert xi == len(xp) and wi == len(wp)
    stamp(2)
    a("s_branch L_qread")

    XP = 128
    a(f"""
L_compute:
s_cmp_eq_u32 s{S_RBB}, 0
s_cselect_b32 s{S_HM}, 64, 0
s_and_b32 s{S_T0}, s{S_WAVE}, 1
s_lshr_b32 s{S_T1}, s{S_WAVE}, 1
v_and_b32 v14, 31, v1
v_lshrrev_b32 v15, 5, v1             ; h
v_bfe_u32 v16, v1, 1, 3
v_xor_b32 v16, v16, v15
v_lshlrev_b32 v16, 4, v16
v_lshl_add_u32 v2, v14, 7, v16
s_lshl_b32 s{S_T2}, s{S_T0}, 12
v_add_u32 v2, s{S_T2}, v2
v_xor_b32 v3, 32, v2
v_xor_b32 v4, 64, v2
v_xor_b32 v5, 96, v2
v_and_b32 v16, 7, v1
v_lshrrev_b32 v17, 1, v16
v_xor_b32 v17, v17, v15
v_lshlrev_b32 v17, 4, v17
v_lshl_add_u32 v6, v16, 7, v17
s_lshl_b32 s{S_T2}, s{S_T0}, 10
v_add_u32 v6, s{S_T2}, v6
v_xor_b32 v7, 32, v6
v_xor_b32 v8, 64, v6
v_xor_b32 v9, 96, v6
v_bfe_u32 v16, v1, 2, 2              ; r4
v_lshl_add_u32 v17, v15, 3, v16      ; 8h + r4
v_and_b32 v18, 3, v1
v_lshlrev_b32 v18, 3, v18            ; 8*c4
v_bfe_u32 v19, v1, 4, 1
v_lshl_add_u32 v18, v19, 5, v18      ; + 32*nsub
v_bfe_u32 v19, v1, 3, 1              ; (r4>>1)&1
v_xor_b32 v19, s{S_T1}, v19
v_lshl_add_u32 v18, v19, 6, v18
v_lshl_add_u32 v10, v17, 7, v18
v_add_u32 v10, {L_W}, v10
v_add_u32 v11, 0x10000, v10
s_lshl_b32 s{S_T2}, s{S_HG}, 1
s_add_u32 s{S_T2}, s{S_T2}, s{S_T1}
s_lshl_b32 s{S_T2}, s{S_T2}, 18
s_lshl_b32 s{S_T3}, s{S_RB}, 1
s_add_u32 s{S_T3}, s{S_T3}, s{S_T0}
s_lshl_b32 s{S_T3}, s{S_T3}, 11
s_add_u32 s{S_T2}, s{S_T2}, s{S_T3}
v_and_b32 v16, 0x33, v1
v_bfe_u32 v17, v1, 2, 1
v_lshl_or_b32 v16, v17, 3, v16
v_bfe_u32 v17, v1, 3, 1
v_lshl_or_b32 v16, v17, 2, v16
v_lshlrev_b32 v12, 4, v16
v_add_u32 v12, s{S_T2}, v12
v_and_b32 v16, 15, v1
v_lshlrev_b32 v16, 4, v16
v_lshl_add_u32 v16, v15, 8, v16
v_bfe_u32 v17, v1, 4, 1
v_lshl_add_u32 v13, v17, 17, v16
v_add_u32 v13, s{S_T2}, v13
s_waitcnt lgkmcnt(0)
""")
    all_srds(True); all_srds(False)
    stamp(0)
    lskip = a.lab()
    a(f"""
s_or_b32 s{S_T0}, s2, s{S_WAVE}
s_cmp_lg_u32 s{S_T0}, 0
s_cbranch_scc1 {lskip}
v_mov_b32 v16, 0
v_mov_b32 v17, 0
v_mov_b32 v18, 0
v_mov_b32 v19, 0
v_lshlrev_b32 v20, 7, v1
""")
    for i in range(12):
        a(f"s_mov_b32 s{S_T0}, {WS_FL + i*8192}")
        a(f"buffer_store_dwordx4 v[16:19], v20, {sr(S_WS)}, s{S_T0} offen sc1")
    a(f"""
s_waitcnt vmcnt(0)
v_mov_b32 v21, 1
s_mov_b64 exec, 1
buffer_store_dword v21, v16, {sr(S_DBG)}, 0 offen sc1
s_mov_b64 exec, -1
{lskip}:
""")
    def wread(dst, p, ks):
        sl = wslot[p]; base = 10 if sl < 8 else 11; off = (sl % 8) * 8192 + ks * 2048
        return [f"ds_read_b64_tr_b16 {vr(dst,2)}, v{base} offset:{off}", f"ds_read_b64_tr_b16 {vr(dst+2,2)}, v{base} offset:{off+512}"]
    ACK, ACV, ACQ = 16, 32, 48
    BQ, BK, BV, BKH, BVH = 168, 184, 200, 216, 16
    steps = []
    for s in range(8):
        for hs in range(2):
            buf = 64 + 16 * (len(steps) % 2); rd = []; mf = []
            for j in range(2):
                ks = 2*hs + j; g = 4*s + ks; x = XP + 4*g
                rd.append(f"ds_read_b128 {vr(x,4)}, v{2+ks} offset:{L_X + xslot[('A',s)]*8192}")
                rd += wread(buf + 8*j, ("A", 1, s), ks) + wread(buf + 8*j + 4, ("A", 2, s), ks)
                mf.append(f"v_mfma_f32_32x32x16_bf16 {vr(ACK,16)}, {vr(buf+8*j,4)}, {vr(x,4)}, {vr(ACK,16) if g else 0}")
                mf.append(f"v_mfma_f32_32x32x16_bf16 {vr(ACV,16)}, {vr(x,4)}, {vr(buf+8*j+4,4)}, {vr(ACV,16) if g else 0}")
            steps.append(dict(st=s, first=(hs == 0), rd=rd, mf=mf, tag=("KV", s, hs)))
    for s in range(8):
        buf = 64 + 16 * (len(steps) % 2); rd = []; mf = []
        for ks in range(4):
            g = 4*s + ks
            rd += wread(buf + 4*ks, ("A", 0, s), ks)
            mf.append(f"v_mfma_f32_32x32x16_bf16 {vr(ACQ,16)}, {vr(buf+4*ks,4)}, {vr(XP+4*g,4)}, {vr(ACQ,16) if g else 0}")
        steps.append(dict(st=8 + s//2, first=(s % 2 == 0), rd=rd, mf=mf, tag=("Q", s, 0)))
    for s in range(8):
        for ks in range(4):
            g = 4*s + ks; buf = 128 + 20 * (g % 2)
            x, xh, wq, wk, wv = buf, buf+4, buf+8, buf+12, buf+16
            rd = [f"ds_read_b128 {vr(x,4)}, v{2+ks} offset:{L_X + xslot[('B',s)]*8192}"]
            rd += wread(wq, ("B", 0, s), ks) + wread(wk, ("B", 1, s), ks) + wread(wv, ("B", 2, s), ks)
            rd.append(f"ds_read_b128 {vr(xh,4)}, v{6+ks} offset:{L_H + s*2048}")
            c = lambda r: vr(r, 16) if g else 0
            mf = [f"v_mfma_f32_32x32x16_bf16 {vr(BQ,16)}, {vr(wq,4)}, {vr(x,4)}, {c(BQ)}",
                  f"v_mfma_f32_32x32x16_bf16 {vr(BK,16)}, {vr(wk,4)}, {vr(x,4)}, {c(BK)}",
                  f"v_mfma_f32_32x32x16_bf16 {vr(BV,16)}, {vr(x,4)}, {vr(wv,4)}, {c(BV)}",
                  f"v_mfma_f32_32x32x16_bf16 {vr(BKH,16)}, {vr(wk,4)}, {vr(xh,4)}, {c(BKH)}",
                  f"v_mfma_f32_32x32x16_bf16 {vr(BVH,16)}, {vr(xh,4)}, {vr(wv,4)}, {c(BVH)}"]
            steps.append(dict(st=12 + s, first=(ks == 0), rd=rd, mf=mf, tag=("B", s, ks)))

    KBF, VBF, QBF, NEGM = 96, 104, 104, 112
    MP, MD, MA = 64, 68, 84
    fill = Filler()
    def q_epilogue_fillers():
        S0, S1 = 32, 232
        fill.add(12)
        for i in range(16): fill.add(f"v_mul_f32 v{ACQ+i}, s{S_C}, v{ACQ+i}")
        for i in range(8): fill.add(f"v_cvt_pk_bf16_f32 v{QBF+i}, v{ACQ+2*i}, v{ACQ+2*i+1}")
        fill.add(2)
        fill.add(f"v_mfma_f32_32x32x16_bf16 {vr(S0,16)}, {vr(KBF,4)}, {vr(QBF,4)}, 0")
        fill.add(f"v_mfma_f32_32x32x16_bf16 {vr(S1,16)}, {vr(KBF+4,4)}, {vr(QBF+4,4)}, 0")
        fill.add(12)
        for e, S in enumerate((S0, S1)):
            m = NEGM + e
            fill.add(f"v_max3_f32 v{m}, v{S}, v{S+1}, v{S+2}")
            for i in range(3, 15, 2): fill.add(f"v_max3_f32 v{m}, v{m}, v{S+i}, v{S+i+1}")
            fill.add(f"v_max_f32 v{m}, v{m}, v{S+15}")
            fill.add(f"v_mov_b32 v{S}, v{m}")
        fill.add(2)
        for e, S in enumerate((S0, S1)): fill.add(f"v_permlane32_swap_b32 v{NEGM+e}, v{S}")
        fill.add(2)
        for e, S in enumerate((S0, S1)):
            fill.add(f"v_max_f32 v{NEGM+e}, v{NEGM+e}, v{S}")
            fill.add(f"v_sub_f32 v{NEGM+e}, 0, v{NEGM+e}")
        fill.add(f"""
s_and_b32 s{S_T0}, s{S_WAVE}, 1
s_lshr_b32 s{S_T1}, s{S_WAVE}, 1
s_lshl_b32 s{S_T1}, s{S_T1}, 2
s_add_u32 s{S_T0}, s{S_T0}, s{S_T1}
s_lshl_b32 s{S_T0}, s{S_T0}, 6
v_add_u32 v116, s{S_T0}, v1
v_lshlrev_b32 v117, 2, v116
v_lshlrev_b32 v116, 4, v116
""")
    def mask_fillers():
        fill.add(f"v_lshlrev_b32 v118, 2, v15\nv_sub_u32 v118, v14, v118\nv_mov_b32 v119, 0xff800000\nv_mov_b32 v120, 0xffff\nv_mov_b32 v121, 0xffff0000")
        fill.add(f"v_add_u32 v122, s{S_HM}, v118")
        def one(dst_c, key, prev, and_dst, hi):
            if prev: fill.add(f"v_cmp_gt_i32 s[98:99], {key}, v122")
            else:    fill.add(f"v_subrev_u32 v123, {key}, v118\nv_cmp_gt_u32 s[98:99], 8, v123")
            fill.add(2)
            fill.add(f"v_cndmask_b32 v{dst_c}, v119, 0, s[98:99]")
            if not hi: fill.add(f"v_cndmask_b32 v{and_dst}, 0, v120, s[98:99]")
            else:      fill.add(f"v_cndmask_b32 v123, 0, v121, s[98:99]\nv_or_b32 v{and_dst}, v{and_dst}, v123")
        for aa in range(4):
            for b in range(4): one(MD + 4*aa + b, 8*aa + b, False, MA + 2*aa + (b >> 1), b & 1)
        for b in range(4): one(MP + b, b, True, MA + 8 + (b >> 1), b & 1)

    a("s_barrier")
    stamp(1)
    for r in steps[0]["rd"]: a(r)
    for i, stp in enumerate(steps):
        nxt = steps[i+1] if i + 1 < len(steps) else None
        tag = stp["tag"]
        a("s_waitcnt lgkmcnt(0)"); fill.tick()
        publish = nxt and nxt["first"] and tag[0] == "B" and tag[1] == cfg.flag_stage
        if publish:
            ls = a.lab()
            a("s_waitcnt vmcnt(0)")
            a(f"s_cmp_lg_u32 s{S_WAVE}, 0\ns_cbranch_scc1 {ls}")
            a(f"v_cmp_eq_u32 vcc, 1, v125\ns_nop 4\ns_cbranch_vccnz {ls}")
            poll(124, 1, S_DBG, tmp=125)
            a(f"{ls}:")
            stamp(4)
        if nxt is None:
            pass
        if nxt and nxt["first"]:
            a("s_barrier"); fill.tick()
        if publish:
            ls = a.lab()
            a(f"s_cmp_lg_u32 s{S_WAVE}, 0\ns_cbranch_scc1 {ls}")
            a(f"s_lshl_b32 s{S_T2}, s{S_HG}, 5\ns_add_u32 s{S_T2}, s{S_T2}, s{S_RB}\ns_lshl_b32 s{S_T2}, s{S_T2}, 7\ns_add_u32 s{S_T2}, s{S_T2}, {FL_KV}")
            a(f"v_mov_b32 v125, 1\ns_mov_b64 exec, 1\nbuffer_store_dword v125, v124, {sr(S_WS)}, s{S_T2} offen sc1\ns_mov_b64 exec, -1")
            a(f"{ls}:")
        rd = list(nxt["rd"]) if nxt else []
        if tag == ("B", 4, 0):
            assert not any("v_sub_f32 v113" in str(x) for x in fill.q) and not any("v116" in str(x) for x in fill.q)
            rd += [f"ds_write_b128 v116, {vr(QBF,4)} offset:{L_QX}", f"ds_write_b128 v116, {vr(QBF+4,4)} offset:{L_QX+2048}",
                   f"ds_write_b32 v117, v{NEGM} offset:{L_MX}", f"ds_write_b32 v117, v{NEGM+1} offset:{L_MX+512}"]
        mf = stp["mf"]
        a(mf[0]); fill.tick()
        half = (len(rd) + 1) // 2
        for r in rd[:half]: a(r); fill.tick()
        a(mf[1]); fill.tick()
        for r in rd[half:]: a(r); fill.tick()
        for m in mf[2:]:
            a(m); fill.tick()
            if tag[0] == "B": fill.take(a, 4)
        if tag == ("KV", 7, 1):
            stamp(2)
            a("s_nop 9")
            a(f"s_mov_b32 s{S_T2}, 0x20000")
            for k in range(8): a(f"v_cvt_pk_bf16_f32 v{KBF+k}, v{ACK+2*k}, v{ACK+2*k+1}")
            a(f"buffer_store_dwordx4 {vr(KBF,4)}, v12, {sr(S_WS)}, 0 offen sc1")
            a(f"buffer_store_dwordx4 {vr(KBF+4,4)}, v12, {sr(S_WS)}, s{S_T2} offen sc1")
            for k in range(8): a(f"v_cvt_pk_bf16_f32 v{VBF+k}, v{ACV+2*k}, v{ACV+2*k+1}")
            a(f"buffer_store_dwordx4 {vr(VBF,4)}, v13, {sr(S_WS)}, 0 offen offset:1024 sc1")
            a(f"buffer_store_dwordx4 {vr(VBF+4,4)}, v13, {sr(S_WS)}, 0 offen offset:1536 sc1")
            a(f"v_mov_b32 v124, 0")
            a(f"buffer_load_dword v125, v124, {sr(S_DBG)}, 0 offen sc1")
        if tag == ("Q", 7, 0):
            stamp(3)
            q_epilogue_fillers(); mask_fillers()
    fill.flush(a)

    AQ0, AQ1, AM = 96, 100, 114
    a(f"""
L_qread:
s_and_b32 s{S_T0}, s{S_WAVE}, 3
s_lshl_b32 s{S_T0}, s{S_T0}, 7
v_add_u32 v116, s{S_T0}, v1
v_lshlrev_b32 v117, 2, v116
v_lshlrev_b32 v116, 4, v116
ds_read_b128 {vr(AQ0,4)}, v116 offset:{L_QX}
ds_read_b128 {vr(AQ1,4)}, v116 offset:{L_QX+1024}
ds_read_b32 v{AM}, v117 offset:{L_MX}
ds_read_b32 v{AM+1}, v117 offset:{L_MX+256}
s_waitcnt lgkmcnt(0)
s_barrier
s_cmp_ge_u32 s{S_WAVE}, 4
s_cbranch_scc1 L_attn_setup
""")
    stamp(5)
    QB, KB, KHB, VB, VHB = 104, 116, 128, 136, 144
    SD, SP, OO = (32, 48), (232, 168), (184, 200)
    PD, PP = (148, 216), (156, 224)
    Z = (160, 248)
    for k in range(8): a(f"v_cvt_pk_bf16_f32 v{QB+k}, v{BQ+2*k}, v{BQ+2*k+1}")
    for k in range(8): a(f"v_cvt_pk_bf16_f32 v{KB+k}, v{BK+2*k}, v{BK+2*k+1}")
    for k in range(8): a(f"v_cvt_pk_bf16_f32 v{KHB+k}, v{BKH+2*k}, v{BKH+2*k+1}")
    a(f"v_mfma_f32_32x32x16_bf16 {vr(SD[0],16)}, {vr(KB,4)}, {vr(QB,4)}, {vr(MD,16)}")
    for k in range(4): a(f"v_cvt_pk_bf16_f32 v{VB+k}, v{BV+2*k}, v{BV+2*k+1}")
    a(f"v_mfma_f32_32x32x16_bf16 {vr(SP[0],16)}, {vr(KHB,4)}, {vr(QB,4)}, {vr(MP,16)}")
    for k in range(4, 8): a(f"v_cvt_pk_bf16_f32 v{VB+k}, v{BV+2*k}, v{BV+2*k+1}")
    a(f"v_mfma_f32_32x32x16_bf16 {vr(SD[1],16)}, {vr(KB+4,4)}, {vr(QB+4,4)}, {vr(MD,16)}")
    for k in range(4): a(f"v_cvt_pk_bf16_f32 v{VHB+k}, v{BVH+2*k}, v{BVH+2*k+1}")
    a(f"v_mfma_f32_32x32x16_bf16 {vr(SP[1],16)}, {vr(KHB+4,4)}, {vr(QB+4,4)}, {vr(MP,16)}")
    for e in range(2): a(f"v_mov_b32 v{PP[e]+2}, 0\nv_mov_b32 v{PP[e]+3}, 0")
    a(f"""
s_and_b32 s{S_T0}, s{S_WAVE}, 1
s_lshl_b32 s{S_T1}, s{S_RBB}, 1
s_add_u32 s{S_T0}, s{S_T0}, s{S_T1}
s_lshl_b32 s{S_T0}, s{S_T0}, 5
s_lshl_b32 s{S_T1}, s{S_HGB}, 2
s_add_u32 s{S_T0}, s{S_T0}, s{S_T1}
s_and_b32 s{S_T1}, s{S_WAVE}, 2
s_add_u32 s{S_T0}, s{S_T0}, s{S_T1}
s_lshl_b32 s{S_T0}, s{S_T0}, 10
s_add_u32 s{S_T0}, s{S_T0}, {WS_OB}
v_lshlrev_b32 v12, 4, v1
""")
    for e in range(2):
        z = Z[e]
        for b in range(4):
            a(f"v_max3_f32 v{z+b}, v{SD[e]+b}, v{SD[e]+4+b}, v{SD[e]+8+b}")
            a(f"v_max3_f32 v{z+b}, v{z+b}, v{SD[e]+12+b}, v{SP[e]+b}")
        a(f"v_max3_f32 v{z+4}, v{z}, v{z+1}, v{z+2}\nv_max_f32 v{z+4}, v{z+4}, v{z+3}\nv_mov_b32 v{z+5}, v{z+4}")
    a("s_nop 1")
    for e in range(2): a(f"v_permlane32_swap_b32 v{Z[e]+4}, v{Z[e]+5}")
    a("s_nop 1")
    for e in range(2):
        z = Z[e]
        a(f"v_max_f32 v{z+4}, v{z+4}, v{z+5}\nv_mul_f32 v{z+4}, s{S_C}, v{z+4}")
        for b in range(4): a(f"v_fma_f32 v{z+b}, v{z+b}, s{S_C}, -v{z+4}")
        for b in range(4): a(f"v_exp_f32 v{z+b}, v{z+b}")
    for e in range(2):
        z = Z[e]
        a(f"v_add_f32 v{z+4}, v{z}, v{z+1}\nv_add_f32 v{z+5}, v{z+2}, v{z+3}\nv_add_f32 v{z+4}, v{z+4}, v{z+5}\nv_mov_b32 v{z+5}, v{z+4}")
    a("s_nop 1")
    for e in range(2): a(f"v_permlane32_swap_b32 v{Z[e]+4}, v{Z[e]+5}")
    a("s_nop 1")
    for e in range(2): a(f"v_add_f32 v{Z[e]+4}, v{Z[e]+4}, v{Z[e]+5}")
    for e in range(2): a(f"v_rcp_f32 v{Z[e]+4}, v{Z[e]+4}")
    a("s_nop 0")
    for e in range(2):
        z = Z[e]
        for b in range(4): a(f"v_mul_f32 v{z+b}, v{z+b}, v{z+4}")
        a(f"v_cvt_pk_bf16_f32 v{z}, v{z}, v{z+1}\nv_cvt_pk_bf16_f32 v{z+1}, v{z+2}, v{z+3}")
        for k in range(8): a(f"v_and_b32 v{PD[e]+k}, v{z+(k&1)}, v{MA+k}")
        for k in range(2): a(f"v_and_b32 v{PP[e]+k}, v{z+k}, v{MA+8+k}")
        a(f"v_mfma_f32_32x32x16_bf16 {vr(OO[e],16)}, {vr(VB,4)}, {vr(PD[e],4)}, 0")
        a(f"v_mfma_f32_32x32x16_bf16 {vr(OO[e],16)}, {vr(VB+4,4)}, {vr(PD[e]+4,4)}, {vr(OO[e],16)}")
        a(f"v_mfma_f32_32x32x16_bf16 {vr(OO[e],16)}, {vr(VHB,4)}, {vr(PP[e],4)}, {vr(OO[e],16)}")
    for k in range(4): a(f"v_cvt_pk_bf16_f32 v{QB+k}, v{OO[0]+2*k}, v{OO[0]+2*k+1}")
    a(f"buffer_store_dwordx4 {vr(QB,4)}, v12, {sr(S_WS)}, s{S_T0} offen sc1")
    a("s_nop 6")
    for k in range(4): a(f"v_cvt_pk_bf16_f32 v{QB+4+k}, v{OO[1]+8+2*k}, v{OO[1]+8+2*k+1}")
    a(f"buffer_store_dwordx4 {vr(QB+4,4)}, v12, {sr(S_WS)}, s{S_T0} offen offset:1024 sc1")

    NM = (16, 32); O = (48, 64); S = (128, 144); RING = 160; AQ = (AQ0, AQ1)
    def kv(t): b = RING + 12 * (t % 4); return b, b + 4, b + 8
    a(f"""
L_attn_setup:
s_and_b32 s{S_T0}, s{S_WAVE}, 3
s_lshl_b32 s{S_T1}, s{S_HG}, 2
s_add_u32 s{S_T0}, s{S_T0}, s{S_T1}
s_lshl_b32 s{S_T0}, s{S_T0}, 1
s_lshr_b32 s{S_T1}, s{S_WAVE}, 2
s_add_u32 s{S_T0}, s{S_T0}, s{S_T1}
s_lshl_b32 s{S_T0}, s{S_T0}, 16
v_lshlrev_b32 v3, 4, v1
v_add_u32 v3, s{S_T0}, v3
v_and_b32 v4, 15, v1
v_lshlrev_b32 v4, 4, v4
v_lshrrev_b32 v7, 5, v1
v_lshl_add_u32 v4, v7, 8, v4
v_add_u32 v4, s{S_T0}, v4
v_mov_b32 v2, 0xdddd
s_lshl_b32 s{S_T0}, s{S_HG}, 5
s_lshl_b32 s{S_T1}, s{S_T1}, 4
s_add_u32 s{S_T0}, s{S_T0}, s{S_T1}
s_lshl_b32 s{S_T0}, s{S_T0}, 7
s_add_u32 s{S_T0}, s{S_T0}, {FL_KV}
v_lshlrev_b32 v8, 7, v1
v_add_u32 v8, s{S_T0}, v8
""")
    for t in range(4):
        for k in range(8): a(f"v_mov_b32 v{kv(t)[1]+k}, 0x3f803f80")
    stamp(6)
    poll(8, 16, S_WS, tmp=7)
    stamp(7)
    a("L_attn_start:")
    def ld(t):
        k, v0_, v1_ = kv(t); off = (t % 2) * 2048
        L = [f"buffer_load_dwordx4 {vr(k,4)}, v3, {sr(S_WS)}, s{S_OFF} offen offset:{off} sc1",
             f"s_mov_b64 exec, {sr(S_MASK,2)}",
             f"buffer_load_dwordx4 {vr(v0_,4)}, v4, {sr(S_WS)}, s{S_OFF} offen offset:{off+1024} sc1",
             f"buffer_load_dwordx4 {vr(v1_,4)}, v4, {sr(S_WS)}, s{S_OFF} offen offset:{off+1536} sc1",
             "s_mov_b64 exec, -1"]
        if t % 2 == 1: L += [f"s_add_u32 s{S_OFF}, s{S_OFF}, 4096", f"s_bitset0_b32 s{S_OFF}, 16"]
        return L
    a(f"s_and_b32 s{S_OFF}, s{S_RB}, 15\ns_lshl_b32 s{S_OFF}, s{S_OFF}, 12")
    for t in range(3):
        for x in ld(t): a(x)
    a(f"""
s_mov_b32 s{S_CUR}, s{S_WOB}
s_mov_b32 s{S_CUR+1}, s{S_WOB+1}
s_mov_b32 s{S_CUR+2}, s{S_WOB+2}
s_mov_b32 s{S_CUR+3}, 0x00020000
s_lshl_b32 s{S_PM0}, s{S_WAVE}, 11
s_lshl_b32 s{S_PSO}, s{S_WAVE}, 14
s_lshl_b32 s{S_T0}, s{S_NB}, 7
s_add_u32 s{S_PSO}, s{S_PSO}, s{S_T0}
s_mov_b32 s{S_PSTEP}, 0x20000
v_bfe_u32 v5, v1, 4, 1
v_lshlrev_b32 v5, 2, v5
v_and_b32 v6, 7, v1
v_xor_b32 v5, v5, v6
v_lshlrev_b32 v5, 4, v5
v_lshrrev_b32 v6, 3, v1
v_lshl_add_u32 v5, v6, 10, v5
v_add_u32 v6, 7168, v5
v_mov_b32 v9, v5
v_mov_b32 v10, v6
s_mov_b32 s{S_IT}, 0
""")
    for q in range(2):
        for k in range(16): a(f"v_mov_b32 v{NM[q]+k}, v{AM+q}")
        for k in range(9): a(f"v_mov_b32 v{O[q]+k}, 0")
    for k in range(8): a(f"v_mov_b32 v{S[1]+8+k}, 0")
    lp = a.lab()
    a(f"s_cmp_ge_u32 s{S_WAVE}, 4\ns_cbranch_scc1 {lp}\ns_setprio 2\ns_branch {lp}b\n{lp}:\ns_setprio 1\n{lp}b:")
    a("s_waitcnt vmcnt(6)")
    a(f"v_mfma_f32_32x32x16_bf16 {vr(S[0],16)}, {vr(kv(0)[0],4)}, {vr(AQ[0],4)}, {vr(NM[0],16)}")
    a("s_nop 11")
    stamp(8)
    a(".p2align 3")
    a("L_attn_loop:")
    for u in range(8):
        t, q = u // 2, u % 2
        c = S[u % 2]; o = S[(u + 1) % 2]
        tp, qp = (u - 1) // 2, (u - 1) % 2
        tn, qn = (u + 1) // 2, (u + 1) % 2
        e = lambda i: a(f"v_exp_f32 v{c+i}, v{c+i}")
        e(0); e(1)
        a(f"v_smfmac_f32_32x32x32_bf16 {vr(O[qp],16)}, {vr(kv(tp)[2],4)}, {vr(o+8,8)}, v2")
        if q == 0:
            for x in ld(t + 3): a(x)
            if t == 0:
                a(f"s_mov_b32 m0, s{S_PM0}")
                a(f"s_add_u32 s{S_PM0}, s{S_PM0}, 16384")
                a(f"buffer_load_dwordx4 v5, {sr(S_CUR)}, s{S_PSO} offen sc1 lds")
                a(f"buffer_load_dwordx4 v6, {sr(S_CUR)}, s{S_PSO} offen offset:1024 sc1 lds")
                a(f"s_add_u32 s{S_PSO}, s{S_PSO}, s{S_PSTEP}")
        e(2); e(3)
        if q == 1: a(f"s_waitcnt vmcnt({6 if t == 3 else 8})")
        e(4)
        a(f"v_mfma_f32_32x32x16_bf16 {vr(o,16)}, {vr(kv(tn)[0],4)}, {vr(AQ[qn],4)}, {vr(NM[qn],16)}")
        for i in range(5, 11): e(i)
        a(f"v_smfmac_f32_32x32x32_bf16 {vr(O[q],16)}, {vr(kv(t)[1],4)}, {vr(c,8)}, v2")
        for i in range(11, 16): e(i)
    evs = sorted(set([cfg.ob_iter, 4, cfg.prio_iter, 8]))
    bits = sum(1 << k for k in evs)
    a(f"s_add_u32 s{S_IT}, s{S_IT}, 1")
    a(f"s_bitcmp0_b32 {bits}, s{S_IT}")
    a("s_cbranch_scc1 L_attn_loop")
    a(f"s_cmp_eq_u32 s{S_IT}, 8\ns_cbranch_scc1 L_attn_done")
    l1, l2, l3 = a.lab(), a.lab(), a.lab()
    a(f"""
s_cmp_ge_u32 s{S_WAVE}, 4
s_cbranch_scc1 {l2}
s_cmp_lg_u32 s{S_IT}, {cfg.ob_iter}
s_cbranch_scc1 {l1}
s_lshl_b32 s{S_T0}, s{S_RBB}, 3
s_add_u32 s{S_T0}, s{S_T0}, s{S_HGB}
s_lshl_b32 s{S_T0}, s{S_T0}, 5
s_add_u32 s{S_T0}, s{S_T0}, s{S_WAVE}
s_lshl_b32 s{S_T0}, s{S_T0}, 2
s_add_u32 s{S_T0}, s{S_T0}, {FL_OB}
v_mov_b32 v7, 1
v_mov_b32 v8, 0
s_waitcnt vmcnt(0)
s_mov_b64 exec, 1
buffer_store_dword v7, v8, {sr(S_WS)}, s{S_T0} offen sc1
s_mov_b64 exec, -1
{l1}:
s_cmp_lg_u32 s{S_IT}, {cfg.prio_iter}
s_cbranch_scc1 {l2}
s_setprio 0
{l2}:
s_cmp_lg_u32 s{S_IT}, 4
s_cbranch_scc1 L_attn_loop
s_lshl_b32 s{S_T0}, s{S_RBO}, 10
s_add_u32 s{S_T0}, s{S_T0}, {FL_OB}
v_lshrrev_b32 v8, 2, v1
v_lshlrev_b32 v8, 7, v8
v_and_b32 v7, 3, v1
v_lshl_add_u32 v8, v7, 2, v8
v_add_u32 v8, s{S_T0}, v8
""")
    poll(8, 32, S_WS, tmp=7)
    a(f"""
s_mov_b32 s{S_CUR}, s{S_WS}
s_mov_b32 s{S_CUR+1}, s{S_WS+1}
s_mov_b32 s{S_CUR+2}, s{S_WS+2}
s_lshl_b32 s{S_PSO}, s{S_RBO}, 16
s_lshl_b32 s{S_T0}, s{S_WAVE}, 11
s_add_u32 s{S_PSO}, s{S_PSO}, s{S_T0}
s_add_u32 s{S_PSO}, s{S_PSO}, {WS_OB}
s_mov_b32 s{S_PSTEP}, 16384
v_lshlrev_b32 v5, 4, v1
v_lshlrev_b32 v6, 4, v1
s_branch L_attn_loop
L_attn_done:
s_setprio 0
v_smfmac_f32_32x32x32_bf16 {vr(O[1],16)}, {vr(kv(3)[2],4)}, {vr(S[1]+8,8)}, v2
""")
    stamp(9)
    thr = f32(2.0**40) if not cfg.force_fallback else f32(2.0**-3)
    a(f"""
s_and_b32 s{S_T0}, s{S_WAVE}, 3
s_mul_i32 s{S_T0}, s{S_T0}, 4608
s_add_u32 s{S_T0}, s{S_T0}, {L_CB}
v_lshlrev_b32 v11, 4, v1
v_add_u32 v11, s{S_T0}, v11
v_lshlrev_b32 v12, 2, v1
v_add_u32 v12, s{S_T0}, v12
s_lshl_b32 s{S_T1}, s{S_WAVE}, 2
s_add_u32 s{S_T1}, s{S_T1}, {L_FB}
v_mov_b32 v13, s{S_T1}
v_and_b32 v14, 7, v1
v_lshlrev_b32 v14, 2, v14
v_add_u32 v14, {L_FB}, v14
s_mov_b32 s{S_T2}, {thr}
v_max3_f32 v7, |v{O[0]}|, |v{O[0]+1}|, |v{O[0]+2}|
v_max3_f32 v7, v7, |v{O[0]+3}|, |v{O[0]+4}|
v_max3_f32 v7, v7, |v{O[0]+5}|, |v{O[0]+6}|
v_max3_f32 v7, v7, |v{O[0]+7}|, |v{O[1]}|
v_max3_f32 v7, v7, |v{O[1]+1}|, |v{O[1]+2}|
v_max3_f32 v7, v7, |v{O[1]+3}|, |v{O[1]+4}|
v_max3_f32 v7, v7, |v{O[1]+5}|, |v{O[1]+6}|
v_max_f32 v7, v7, |v{O[1]+7}|
v_mul_f32 v7, {f32(2.0**-80)}, v7
v_max3_f32 v7, v7, v{O[0]+8}, v{O[1]+8}
v_cmp_nlt_f32 vcc, v7, s{S_T2}
s_nop 1
s_cmp_lg_u64 vcc, 0
s_cselect_b32 s{S_T1}, 1, 0
v_mov_b32 v7, s{S_T1}
ds_write_b32 v13, v7
s_cmp_lt_u32 s{S_WAVE}, 4
s_cbranch_scc1 L_cmb1
ds_write_b128 v11, {vr(O[0],4)}
ds_write_b128 v11, {vr(O[0]+4,4)} offset:1024
ds_write_b128 v11, {vr(O[1],4)} offset:2048
ds_write_b128 v11, {vr(O[1]+4,4)} offset:3072
ds_write_b32 v12, v{O[0]+8} offset:4096
ds_write_b32 v12, v{O[1]+8} offset:4352
L_cmb1:
s_waitcnt vmcnt(0) lgkmcnt(0)
s_barrier
ds_read_b32 v7, v14
s_cmp_ge_u32 s{S_WAVE}, 4
s_cbranch_scc1 L_cmb2
ds_read_b128 {vr(128,4)}, v11
ds_read_b128 {vr(132,4)}, v11 offset:1024
ds_read_b128 {vr(136,4)}, v11 offset:2048
ds_read_b128 {vr(140,4)}, v11 offset:3072
ds_read_b32 v144, v12 offset:4096
ds_read_b32 v145, v12 offset:4352
L_cmb2:
s_waitcnt lgkmcnt(0)
v_cmp_ne_u32 vcc, 0, v7
s_nop 1
s_cmp_lg_u64 vcc, 0
s_cselect_b32 s{S_T1}, 1, 0
s_andn2_b32 s{S_T1}, s{S_T1}, s{S_PASS}
s_cbranch_scc1 L_fallback
""")
    stamp(10)
    def oproj_addr():
        a(f"""
s_and_b32 s{S_T0}, s{S_WAVE}, 1
s_bfe_u32 s{S_T1}, s{S_WAVE}, 0x10001
v_lshrrev_b32 v15, 5, v1             ; h
v_bfe_u32 v16, v1, 2, 2              ; r4
v_lshl_add_u32 v17, v15, 2, v16      ; 4h + r4
v_and_b32 v18, 1, v1
v_lshlrev_b32 v18, 5, v18            ; 32B * (c4&1)
v_bfe_u32 v19, v1, 4, 1
v_lshl_add_u32 v18, v19, 4, v18      ; + 16B * g'
v_bfe_u32 v19, v1, 1, 1
v_lshl_add_u32 v18, v19, 3, v18      ; + 8B * (c4>>1)
v_bfe_u32 v19, v1, 3, 1
v_xor_b32 v19, s{S_T1}, v19
v_lshl_add_u32 v18, v19, 6, v18
v_lshl_add_u32 v20, v17, 7, v18
s_lshl_b32 s{S_T2}, s{S_T0}, 15
s_add_u32 s{S_T2}, s{S_T2}, {L_O}
v_lshlrev_b32 v21, 4, v1
v_add_u32 v21, s{S_T2}, v21
v_and_b32 v22, 31, v1
""")
    def oproj_store(acc):
        for k in range(8): a(f"v_cvt_pk_bf16_f32 v{24+k}, v{acc+2*k}, v{acc+2*k+1}")
        a(f"buffer_store_dwordx4 {vr(24,4)}, v22, {sr(S_OUT)}, s{S_T3} offen")
        a(f"buffer_store_dwordx4 {vr(28,4)}, v22, {sr(S_OUT)}, s{S_T3} offen offset:16")
    def oa_fetch():
        a(f"""
s_lshl_b32 s{S_T0}, s{S_RBO}, 3
s_add_u32 s{S_T0}, s{S_T0}, s{S_WAVE}
s_lshl_b32 s{S_T0}, s{S_T0}, 7
s_add_u32 s{S_T0}, s{S_T0}, {FL_OA}
v_lshlrev_b32 v8, 2, v1
v_add_u32 v8, s{S_T0}, v8
v_lshlrev_b32 v5, 4, v1
s_lshl_b32 s{S_PM0}, s{S_WAVE}, 12
s_lshl_b32 s{S_PSO}, s{S_RBO}, 16
s_add_u32 s{S_PSO}, s{S_PSO}, s{S_PM0}
s_add_u32 s{S_PSO}, s{S_PSO}, {WS_OA}
s_add_u32 s{S_T1}, s{S_PSO}, 32768
""")
        poll(8, 4, S_WS, tmp=7)
        stamp(13)
        for s in range(4):
            a(f"s_add_u32 m0, s{S_PM0}, {L_O}\ns_nop 0")
            a(f"buffer_load_dwordx4 v5, {sr(S_WS)}, s{S_PSO} offen offset:{s*1024} sc1 lds")
            a(f"s_add_u32 m0, s{S_PM0}, {L_O + 32768}\ns_nop 0")
            a(f"buffer_load_dwordx4 v5, {sr(S_WS)}, s{S_T1} offen offset:{s*1024} sc1 lds")

    a(f"s_cmp_ge_u32 s{S_WAVE}, 4\ns_cbranch_scc1 L_oprojB")
    a(f"""
v_add_f32 v144, v144, v{O[0]+8}
v_add_f32 v145, v145, v{O[1]+8}
v_rcp_f32 v144, v144
v_rcp_f32 v145, v145
s_lshl_b32 s{S_T0}, s{S_RB}, 6
s_lshl_b32 s{S_T1}, s{S_HG}, 2
s_add_u32 s{S_T0}, s{S_T0}, s{S_T1}
s_add_u32 s{S_T0}, s{S_T0}, s{S_WAVE}
s_lshl_b32 s{S_T0}, s{S_T0}, 10
s_add_u32 s{S_T0}, s{S_T0}, {WS_OA}
s_add_u32 s{S_T1}, s{S_T0}, 32768
v_lshlrev_b32 v12, 4, v1
""")
    for q in range(2):
        for k in range(8): a(f"v_add_f32 v{128+8*q+k}, v{128+8*q+k}, v{O[q]+k}")
        for k in range(8): a(f"v_mul_f32 v{128+8*q+k}, v{128+8*q+k}, v{144+q}")
        for k in range(4): a(f"v_cvt_pk_bf16_f32 v{148+4*q+k}, v{128+8*q+2*k}, v{128+8*q+2*k+1}")
        a(f"buffer_store_dwordx4 {vr(148+4*q,4)}, v12, {sr(S_WS)}, s{S_T0 if q == 0 else S_T1} offen sc1")
    oproj_addr()
    a(f"""
v_lshlrev_b32 v22, 11, v22
v_lshl_add_u32 v22, v15, 5, v22
s_lshl_b32 s{S_T3}, s{S_RBO}, 17
s_lshl_b32 s{S_T0}, s{S_T0}, 16
s_add_u32 s{S_T3}, s{S_T3}, s{S_T0}
s_lshl_b32 s{S_T1}, s{S_T1}, 6
s_add_u32 s{S_T3}, s{S_T3}, s{S_T1}
s_lshl_b32 s{S_T1}, s{S_NB}, 7
s_add_u32 s{S_T3}, s{S_T3}, s{S_T1}
s_lshl_b32 s{S_T0}, s{S_RB}, 3
s_add_u32 s{S_T0}, s{S_T0}, s{S_HG}
s_lshl_b32 s{S_T0}, s{S_T0}, 5
s_add_u32 s{S_T0}, s{S_T0}, s{S_WAVE}
s_lshl_b32 s{S_T0}, s{S_T0}, 2
s_add_u32 s{S_T0}, s{S_T0}, {FL_OA}
v_mov_b32 v7, 1
v_mov_b32 v8, 0
s_barrier
s_waitcnt vmcnt(0)
s_mov_b64 exec, 1
buffer_store_dword v7, v8, {sr(S_WS)}, s{S_T0} offen sc1
s_mov_b64 exec, -1
""")
    stamp(11)
    a("s_barrier")
    WF = 128
    for k in range(32):
        a(f"ds_read_b64_tr_b16 {vr(WF+4*k,2)}, v20 offset:{L_WO + k*2048}")
        a(f"ds_read_b64_tr_b16 {vr(WF+4*k+2,2)}, v20 offset:{L_WO + k*2048 + 1024}")
    a("s_waitcnt lgkmcnt(0)")
    stamp(12)
    oa_fetch()
    ACC = 32; OF = 64
    for s in range(4):
        a(f"s_waitcnt vmcnt({6 - 2*s})\ns_barrier")
        buf = OF + 32 * (s % 2)
        for w in range(8): a(f"ds_read_b128 {vr(buf+4*w,4)}, v21 offset:{(4*w+s)*1024}")
        for w in range(8):
            a(f"s_waitcnt lgkmcnt({7-w})")
            a(f"v_mfma_f32_32x32x16_bf16 {vr(ACC,16)}, {vr(WF+4*(4*w+s),4)}, {vr(buf+4*w,4)}, {vr(ACC,16) if (s or w) else 0}")
    a("s_nop 11")
    oproj_store(ACC)
    stamp(14)
    a("s_branch L_end")

    a("L_oprojB:")
    oproj_addr()
    a(f"""
v_lshlrev_b32 v22, 12, v22
v_lshl_add_u32 v22, v15, 5, v22
s_lshl_b32 s{S_T3}, s{S_RBO}, 17
s_lshl_b32 s{S_T0}, s{S_T0}, 11
s_add_u32 s{S_T3}, s{S_T3}, s{S_T0}
s_lshl_b32 s{S_T1}, s{S_T1}, 6
s_add_u32 s{S_T3}, s{S_T3}, s{S_T1}
s_lshl_b32 s{S_T1}, s{S_NB}, 7
s_add_u32 s{S_T3}, s{S_T3}, s{S_T1}
s_add_u32 s{S_T3}, s{S_T3}, 1024
""")
    def brd(k):
        b = 64 + 8 * (k % 5)
        a(f"ds_read_b64_tr_b16 {vr(b,2)}, v20 offset:{L_WO + k*2048}")
        a(f"ds_read_b64_tr_b16 {vr(b+2,2)}, v20 offset:{L_WO + k*2048 + 1024}")
        a(f"ds_read_b128 {vr(b+4,4)}, v21 offset:{k*1024}")
    for k in range(4): brd(k)
    for k in range(32):
        if k + 4 < 32: brd(k + 4)
        left = min(4, 31 - k)
        a(f"s_waitcnt lgkmcnt({3*left})")
        if k == 31: a("s_barrier")
        b = 64 + 8 * (k % 5)
        a(f"v_mfma_f32_32x32x16_bf16 {vr(ACC,16)}, {vr(b,4)}, {vr(b+4,4)}, {vr(ACC,16) if k else 0}")
    a(f"""
s_sub_u32 s{S_T0}, s{S_WAVE}, 4
s_lshl_b32 s{S_PM0}, s{S_T0}, 11
s_lshl_b32 s{S_PSO}, s{S_T0}, 14
s_lshl_b32 s{S_T0}, s{S_NB}, 7
s_add_u32 s{S_PSO}, s{S_PSO}, s{S_T0}
""")
    for i in range(8):
        a(f"s_add_u32 m0, s{S_PM0}, {L_WO + i*8192}")
        a(f"s_add_u32 s{S_T0}, s{S_PSO}, {i*65536}")
        a(f"buffer_load_dwordx4 v9, {sr(S_WOA)}, s{S_T0} offen lds")
        a(f"buffer_load_dwordx4 v10, {sr(S_WOA)}, s{S_T0} offen offset:1024 lds")
    oproj_store(ACC)
    stamp(11)
    a("s_waitcnt vmcnt(2)\ns_barrier")
    stamp(12)
    oa_fetch()
    for s in range(4): a(f"s_waitcnt vmcnt({6 - 2*s})\ns_barrier")
    stamp(14)
    a("L_end:")
    if cfg.probe >= -1:
        if cfg.probe == 15: a("s_waitcnt vmcnt(0)"); stamp(15)
        if cfg.probe == -1: a("s_mov_b32 s4, s92")
        if cfg.memtest: a("s_mov_b32 s4, s101")
        a(f"s_cmp_{'lt' if cfg.probe_hi else 'ge'}_u32 s{S_WAVE}, 4\ns_cbranch_scc1 L_exit")
        a("s_add_u32 s4, s4, 6000\ns_mov_b32 s5, 200000\nL_pad:\ns_memrealtime s[90:91]\ns_waitcnt lgkmcnt(0)\ns_sub_u32 s6, s90, s4\ns_cmp_ge_i32 s6, 0\ns_cbranch_scc1 L_exit\ns_sub_u32 s5, s5, 1\ns_cmp_lg_u32 s5, 0\ns_cbranch_scc1 L_pad")
    if cfg.stamps:
        a(f"s_waitcnt vmcnt(0)\ns_memtime s[90:91]\ns_memrealtime s[96:97]\ns_waitcnt lgkmcnt(0)\ns_mov_b32 s{S_STAMP+15}, s90")
        a(f"s_mov_b32 s{S_STAMP+16}, s94\ns_mov_b32 s{S_STAMP+17}, s92\ns_mov_b32 s{S_STAMP+18}, s96\ns_getreg_b32 s{S_STAMP+19}, hwreg(HW_REG_XCC_ID)")
        a(f"s_lshl_b32 s{S_T0}, s2, 3\ns_add_u32 s{S_T0}, s{S_T0}, s{S_WAVE}\ns_lshl_b32 s{S_T0}, s{S_T0}, 7\ns_add_u32 s{S_T0}, s{S_T0}, {WS_ST}")
        a("v_mov_b32 v8, 0\ns_mov_b64 exec, 1")
        for i in range(5):
            for k in range(4): a(f"v_mov_b32 v{12+k}, s{S_STAMP+4*i+k}")
            a(f"buffer_store_dwordx4 v[12:15], v8, {sr(S_WS)}, s{S_T0} offen offset:{16*i}\ns_nop 1")
    a("L_exit:\ns_endpgm")

    a(f"""
L_fallback:
s_mov_b32 s{S_PASS}, 1
s_mov_b32 s{S_OFF}, 0
v_mov_b32 v{AM}, 0xff800000
v_mov_b32 v{AM+1}, 0xff800000
L_fb_loop:
buffer_load_dwordx4 {vr(RING,4)}, v3, {sr(S_WS)}, s{S_OFF} offen sc1
s_waitcnt vmcnt(0)
v_mfma_f32_32x32x16_bf16 {vr(S[0],16)}, {vr(RING,4)}, {vr(AQ[0],4)}, 0
v_mfma_f32_32x32x16_bf16 {vr(S[1],16)}, {vr(RING,4)}, {vr(AQ[1],4)}, 0
s_nop 15
""")
    for q in range(2):
        for i in range(0, 16, 2): a(f"v_max3_f32 v{AM+q}, v{AM+q}, v{S[q]+i}, v{S[q]+i+1}")
    a(f"""
s_add_u32 s{S_OFF}, s{S_OFF}, 2048
s_cmp_lt_u32 s{S_OFF}, 65536
s_cbranch_scc1 L_fb_loop
v_mov_b32 v7, v{AM}
v_mov_b32 v8, v{AM+1}
s_nop 1
v_permlane32_swap_b32 v{AM}, v7
v_permlane32_swap_b32 v{AM+1}, v8
s_nop 1
v_max_f32 v{AM}, v{AM}, v7
v_max_f32 v{AM+1}, v{AM+1}, v8
s_lshl_b32 s{S_T0}, s{S_WAVE}, 9
s_add_u32 s{S_T0}, s{S_T0}, {L_FB + 256}
v_lshlrev_b32 v11, 2, v1
v_add_u32 v11, s{S_T0}, v11
s_xor_b32 s{S_T0}, s{S_WAVE}, 4
s_lshl_b32 s{S_T0}, s{S_T0}, 9
s_add_u32 s{S_T0}, s{S_T0}, {L_FB + 256}
v_lshlrev_b32 v12, 2, v1
v_add_u32 v12, s{S_T0}, v12
ds_write_b32 v11, v{AM}
ds_write_b32 v11, v{AM+1} offset:256
s_waitcnt lgkmcnt(0)
s_barrier
ds_read_b32 v7, v12
ds_read_b32 v8, v12 offset:256
s_waitcnt lgkmcnt(0)
v_max_f32 v{AM}, v{AM}, v7
v_max_f32 v{AM+1}, v{AM+1}, v8
v_sub_f32 v{AM}, 0, v{AM}
v_sub_f32 v{AM+1}, 0, v{AM+1}
s_branch L_attn_start
""")
    head = open("cdna_kernels/" + NAME + ".s.ref").read().split("\n")
    top = [l for l in head if l.startswith(";") and "@launch" not in l and not l.startswith("; Override") and not l.startswith("; grid=")]
    out = "\n".join(top) + f"""
; @launch grid=(256,1,1) block=(512,1,1) lds={LDS_BYTES}
.amdgcn_target "amdgcn-amd-amdhsa--gfx950"
.text
.globl {NAME}_kernel
.p2align 8
.type {NAME}_kernel,@function
{NAME}_kernel:
""" + a.text() + f""".section .rodata,"a"
.p2align 6
.amdhsa_kernel {NAME}_kernel
  .amdhsa_next_free_vgpr 256
  .amdhsa_next_free_sgpr 102
  .amdhsa_accum_offset 256
  .amdhsa_group_segment_fixed_size 0
  .amdhsa_kernarg_size 72
  .amdhsa_user_sgpr_count 2
  .amdhsa_user_sgpr_kernarg_segment_ptr 1
  .amdhsa_system_sgpr_workgroup_id_x 1
.end_amdhsa_kernel
"""
    return out

if __name__ == "__main__":
    cfg = Cfg()
    outp = "cdna_kernels/" + NAME + ".s"
    for arg in sys.argv[1:]:
        if arg.startswith("-o"): outp = arg[2:]
        else:
            k, v = arg.split("="); setattr(cfg, k, type(getattr(Cfg, k))(int(v)))
    open(outp, "w").write(gen(cfg))
    print("wrote", outp)
```

```python
import sys, math, struct

NAME = "concat_heads__softmax_full_mha__sliding_local_dilated__prompt"

class Cfg:
    stamps = False
    flag_stage = 1
    ob_iter = 3
    prio_iter = 5
    force_fallback = False
    spin = 400000
    depth = 5
    rot = 1
    shot_step = 3
    shot = 8
    gap = 3
    la = 6
    arot = 0
    probe = -2
    probe_hi = 0
    cpf = 1
    ackwait = 1
    rt = 0
    tailst = 0
    noload = 0
    nocomp = 0
    nostore = 0

def f32(x): return "0x%08x" % struct.unpack("<I", struct.pack("<f", x))[0]

WS_KV = 0
WS_OA = 4 << 20
WS_OB = 6 << 20
WS_FL = 8 << 20
FL_KV = WS_FL
WS_ST = WS_FL + 768 * 128
WS_SIZE = WS_ST + 256 * 8 * 128

NX, NW = 6, 12
L_X = 0
L_H = 32768
L_W = 57344
L_WOB = 0
L_WOA = 65536
L_CB = 131072
L_FB = L_CB + 18432
L_QX = 49152
L_MX = 155648
L_DONE = L_MX + 2048
L_HX = L_DONE + 64
LDS_BYTES = 163840

S_XA, S_WA, S_WOA, S_XB, S_WB, S_WOB, S_OUT, S_DBG, S_WS = 24, 28, 32, 36, 40, 44, 48, 52, 56
S_WAVE, S_RB, S_HG, S_RBO, S_NB = 60, 61, 62, 65, 66
S_T0, S_T1, S_T2, S_T3 = 67, 68, 69, 70
S_LB = 71
S_ROT = 72
S_SLOT = 63
S_CUR = 76
S_MASK = 80
S_OFF, S_IT, S_PP, S_PREG, S_PASS, S_SPIN, S_C = 82, 83, 84, 85, 87, 88, 89
S_EV = 86
S_OBO = 63
S_OAO = 64
S_HM = 100
S_STAMP = 4

class Asm:
    def __init__(self): self.L = []; self.nlab = 0
    def __call__(self, s):
        for line in s.strip("\n").split("\n"):
            line = line.strip()
            if not line: continue
            if line.endswith(":") or line.startswith(";") or line.startswith("."): self.L.append(line)
            else: self.L.append("    " + line)
    def lab(self, p="L"):
        self.nlab += 1; return f"{p}_{self.nlab}"
    def text(self): return "\n".join(self.L) + "\n"

def vr(a, n): return f"v[{a}:{a+n-1}]"
def sr(a, n=4): return f"s[{a}:{a+n-1}]"
def mfma(d, a_, b_, c): return f"v_mfma_f32_32x32x16_bf16 {vr(d,16)}, {vr(a_,4)}, {vr(b_,4)}, {vr(c,16) if c is not None else 0}"

class Filler:
    def __init__(self): self.q = []; self.wait = 0
    def add(self, *items):
        for it in items:
            if isinstance(it, str):
                self.q += [x.strip() for x in it.strip().split("\n") if x.strip()]
            else: self.q.append(it)
    def tick(self, n=1): self.wait = max(0, self.wait - n)
    def take(self, a, k):
        while k > 0 and self.q:
            if isinstance(self.q[0], int):
                self.wait = max(self.wait, self.q.pop(0)); continue
            if self.wait > 0 or self.q[0] == "QX": return
            a(self.q.pop(0)); k -= 1
    def flush(self, a):
        while self.q:
            if isinstance(self.q[0], int):
                self.wait = max(self.wait, self.q.pop(0)); continue
            while self.wait > 0:
                n = min(self.wait, 16); a(f"s_nop {n-1}"); self.wait -= n
            a(self.q.pop(0))

def gen(cfg):
    a = Asm()
    def stamp(i):
        if cfg.tailst == 2: return
        if cfg.probe == i:
            a(f"s_memrealtime s[90:91]\ns_waitcnt lgkmcnt(0)\ns_mov_b32 s4, s90")
        if cfg.stamps:
            a(f"{'s_memrealtime' if cfg.rt else 's_memtime'} s[90:91]\ns_waitcnt lgkmcnt(0)\ns_mov_b32 s{S_STAMP+i}, s90")
    def set_exec(nlanes):
        if nlanes < 32: a(f"s_mov_b64 exec, {hex((1 << nlanes) - 1)}")
        else: a("s_mov_b32 exec_hi, 0")
    def poll(voff, nlanes, srdi, tmp, preloaded=False):
        lp, dn, ck = a.lab("L_poll"), a.lab("L_pdone"), a.lab("L_pchk")
        set_exec(nlanes)
        a(f"s_mov_b32 s{S_SPIN}, {cfg.spin}")
        if preloaded: a(f"s_branch {ck}")
        a(f"{lp}:")
        a(f"buffer_load_dword v{tmp}, v{voff}, {sr(srdi)}, 0 offen sc1")
        a(f"{ck}:")
        a(f"s_waitcnt vmcnt(0)")
        a(f"v_cmp_ne_u32 vcc, 1, v{tmp}")
        a(f"s_cbranch_vccz {dn}")
        a(f"s_sub_u32 s{S_SPIN}, s{S_SPIN}, 1\ns_cmp_lg_u32 s{S_SPIN}, 0\ns_cbranch_scc1 {lp}")
        a(f"{dn}:")
        a("s_mov_b64 exec, -1")

    stages = []
    for s in range(8): stages.append(dict(n=f"KV{s}", p=[("x", "A", s), ("w", "A", 1, s), ("w", "A", 2, s)]))
    for s in range(4): stages.append(dict(n=f"Q{s}", p=[("w", "A", 0, 2*s), ("w", "A", 0, 2*s+1)]))
    for s in range(8): stages.append(dict(n=f"B{s}", p=([("h",)] if s == 0 else []) + [("x", "B", s), ("w", "B", 0, s), ("w", "B", 1, s), ("w", "B", 2, s)]))
    stages[18]["p"].append(("f",))
    stage_of = {p: si for si, st in enumerate(stages) for p in st["p"]}
    seq = [p for st in stages for p in st["p"]]
    early = []
    if cfg.shot >= 0:
        early = [("x", "B", 0), ("w", "B", 0, 0), ("w", "B", 1, 0), ("w", "B", 2, 0), ("x", "B", 1)]
        seq = [p for p in seq if p not in early]
    points = {cfg.shot + k * cfg.shot_step: k for k in range(8)} if early else {}
    assert all(i < seq.index(("h",)) for i in points)
    D = cfg.depth
    land = {}; hi = -1
    for si, st in enumerate(stages):
        hi = max(hi, max(seq.index(p) for p in st["p"] if p in seq)); land[si] = hi
    slot = {}; busy = {"x": [None] * NX, "w": [None] * NW}
    for p in early:
        k = busy[p[0]].index(None); busy[p[0]][k] = stage_of[p]; slot[p] = k
    prog = []; nxt = [0]; passed = [-1]
    def try_issue(lim):
        while nxt[0] < min(lim, len(seq)):
            p = seq[nxt[0]]
            free = lambda tab, k: tab[k] is None or passed[0] >= tab[k] + 2
            if p[0] in "xw":
                tab = busy[p[0]]
                ok = [k for k in range(len(tab)) if free(tab, k)]
                if not ok: return
                k = min(ok, key=lambda k: (-1 if tab[k] is None else tab[k]))
                tab[k] = stage_of[p]; slot[p] = k
            if p[0] == "h":
                if not (free(busy["x"], 4) and free(busy["x"], 5)): return
                busy["x"][4] = busy["x"][5] = 99
            prog.append(("issue", p))
            if nxt[0] in points: prog.append(("shot", points[nxt[0]]))
            nxt[0] += 1
    try_issue(D); prog.append(("start",))
    for j in range(len(seq)):
        assert nxt[0] > j
        prog.append(("wait", j, nxt[0]))
        try_issue(j + 1 + D)
        for si in [si for si in land if land[si] == j]:
            prog.append(("bar", si)); passed[0] = si
            try_issue(j + 1 + D)

    ptr = [(S_XA, 0, 2 << 20), (S_WA, 8, 3 << 19), (S_WOA, 16, 1 << 19), (S_XB, 24, 2 << 20), (S_WB, 32, 3 << 19),
           (S_WOB, 40, 1 << 19), (S_OUT, 48, 4 << 20), (S_DBG, 56, 256), (S_WS, 64, WS_SIZE)]
    a("; generated by gen/gen.py\ns_cmp_ge_u32 s2, 256\ns_cbranch_scc1 L_exit")
    for d, off, n in ptr: a(f"s_load_dwordx2 {sr(d,2)}, s[0:1], {off}")
    if cfg.cpf:
        a(f"""
s_getpc_b64 s[96:97]
L_pc:
s_lshr_b32 s{S_T1}, s2, 3
s_lshl_b32 s{S_T1}, s{S_T1}, 10
v_lshlrev_b32 v2, 4, v0
v_add_u32 v2, s{S_T1}, v2
v_min_u32 v2, L_code_end - L_pc - 16, v2
v_mov_b32 v3, s97
v_add_co_u32 v2, vcc, s96, v2
v_cmp_gt_u32 s[98:99], 64, v0
v_addc_co_u32 v3, vcc, 0, v3, vcc
s_mov_b64 exec, s[98:99]
s_cbranch_execz L_nopf
global_load_dwordx4 v[112:115], v[2:3], off
L_nopf:
s_mov_b64 exec, -1
""")
    if cfg.stamps: a("s_memrealtime s[92:93]\ns_memtime s[94:95]")
    elif cfg.probe >= -1: a("s_memrealtime s[92:93]")
    a(f"""
v_lshrrev_b32 v2, 6, v0
v_and_b32 v1, 63, v0
v_readfirstlane_b32 s{S_WAVE}, v2
s_and_b32 s{S_T0}, s2, 7
s_lshr_b32 s{S_T1}, s2, 3
s_and_b32 s{S_HG}, s{S_T0}, 1
s_lshl_b32 s{S_HG}, s{S_HG}, 2
s_and_b32 s{S_T2}, s{S_T1}, 3
s_or_b32 s{S_HG}, s{S_HG}, s{S_T2}
s_lshr_b32 s{S_RB}, s{S_T0}, 1
s_lshl_b32 s{S_RB}, s{S_RB}, 3
s_lshr_b32 s{S_T2}, s{S_T1}, 2
s_or_b32 s{S_RB}, s{S_RB}, s{S_T2}
s_lshl_b32 s{S_RBO}, s{S_T0}, 2
s_lshr_b32 s{S_T2}, s{S_T1}, 3
s_or_b32 s{S_RBO}, s{S_RBO}, s{S_T2}
s_and_b32 s{S_NB}, s{S_T1}, 7
s_mov_b32 s{S_MASK}, 0xffff
s_mov_b32 s{S_MASK+1}, 0xffff
s_mov_b32 s{S_PASS}, 0
s_mov_b32 s{S_C}, {f32(0.25 * math.log2(math.e))}
""")
    for d, off, n in ptr: a(f"s_mov_b32 s{d+2}, {hex(n)}\ns_mov_b32 s{d+3}, 0x00020000")
    a(f"s_cmp_lt_u32 s{S_WAVE}, 4\ns_cbranch_scc1 L_compute")

    a(f"""
; ---------------- loader ----------------
s_sub_u32 s{S_T0}, s{S_WAVE}, 4
s_lshl_b32 s{S_LB}, s{S_T0}, 11
s_lshl_b32 s{S_T1}, s{S_T0}, 4
v_lshrrev_b32 v10, 3, v1
v_add_u32 v11, s{S_T1}, v10
v_and_b32 v12, 7, v1
v_lshrrev_b32 v13, 4, v1
v_xor_b32 v14, v12, v13
v_lshlrev_b32 v14, 4, v14
s_lshl_b32 s{S_T0}, s{S_RB}, 16
v_add_u32 v18, s{S_T0}, v14
v_xor_b32 v15, 64, v18
v_lshl_add_u32 v2, v11, 10, v18
v_lshl_add_u32 v3, v11, 10, v15
v_add_u32 v3, 7168, v3
v_and_b32 v13, 1, v13
v_lshlrev_b32 v13, 2, v13
v_xor_b32 v13, v12, v13
v_lshlrev_b32 v13, 4, v13            ; W chunk
v_mul_u32_u24 v4, 3072, v11
s_lshl_b32 s{S_T1}, s{S_HG}, 7
v_add3_u32 v4, v4, v13, s{S_T1}
v_add_u32 v5, {8*3072-1024}, v4
v_and_b32 v16, 31, v11
v_lshrrev_b32 v17, 5, v11
v_lshl_add_u32 v16, v16, 1, v17
v_lshl_add_u32 v6, v16, 10, v18
v_lshl_add_u32 v7, v16, 10, v15
v_add_u32 v7, {16*1024-1024}, v7
s_sub_u32 s{S_T0}, s{S_T0}, 16384
s_cmp_eq_u32 s{S_RB}, 0
s_cselect_b32 s{S_T0}, 0x80000000, s{S_T0}
v_lshl_add_u32 v8, v10, 11, v14
v_add_u32 v8, s{S_T0}, v8
v_xor_b32 v19, 64, v8
s_lshl_b32 s{S_ROT}, s{S_HG}, 1
s_add_u32 s{S_ROT}, s{S_ROT}, s{S_RB}
s_lshr_b32 s{S_T1}, s{S_HG}, 2
s_add_u32 s{S_ROT}, s{S_ROT}, s{S_T1}
s_and_b32 s{S_ROT}, s{S_ROT}, {7 if cfg.rot else 0}
s_lshl_b32 s{S_ROT}, s{S_ROT}, 7
s_and_b32 s{S_SLOT}, s{S_RB}, 7
""")
    TX = [73, 74, 75, 76, 77, 78, 79, 82]; TW = [83, 84, 85, 86, 88, 98, 99, 100]
    for k in range(8):
        a(f"s_add_u32 s{TX[k]}, s{S_ROT}, {k*128}\ns_and_b32 s{TX[k]}, s{TX[k]}, 1023\ns_mul_i32 s{TW[k]}, s{TX[k]}, 1536")
    a("s_waitcnt lgkmcnt(0)")
    cnt = lambda p: {"h": 4, "f": 1}.get(p[0], 2)
    AQ0, AQ1, AM = 96, 100, 114
    NM = (16, 32); O = (48, 64); S = (128, 144); RING = 160; AQ = (AQ0, AQ1)
    def kv(t): b = RING + 12 * (t % 4); return b, b + 4, b + 8
    def kvflag_load():
        a(f"""
s_lshl_b32 s{S_T0}, s{S_HG}, 1
s_lshr_b32 s{S_T1}, s{S_WAVE}, 2
s_add_u32 s{S_T0}, s{S_T0}, s{S_T1}
s_lshl_b32 s{S_T0}, s{S_T0}, 11
s_add_u32 s{S_T0}, s{S_T0}, {FL_KV}
v_lshlrev_b32 v9, 7, v1
v_add_u32 v9, s{S_T0}, v9
s_mov_b64 exec, 0xffff
buffer_load_dword v13, v9, {sr(S_WS)}, 0 offen sc1
s_mov_b64 exec, -1
""")
    def q_read_and_addr():
        a(f"""
s_and_b32 s{S_T0}, s{S_WAVE}, 3
s_lshl_b32 s{S_T2}, s{S_T0}, 7
v_add_u32 v116, s{S_T2}, v1
v_lshlrev_b32 v117, 2, v116
v_lshlrev_b32 v116, 4, v116
v_add_u32 v117, {L_MX}, v117
v_add_u32 v116, {L_QX}, v116
ds_read_b128 {vr(AQ0,4)}, v116
ds_read_b128 {vr(AQ1,4)}, v116 offset:1024
ds_read_b32 v{AM}, v117
ds_read_b32 v{AM+1}, v117 offset:256
s_lshl_b32 s{S_T1}, s{S_HG}, 2
s_add_u32 s{S_T0}, s{S_T0}, s{S_T1}
s_lshl_b32 s{S_T0}, s{S_T0}, 1
s_lshr_b32 s{S_T1}, s{S_WAVE}, 2
s_add_u32 s{S_T0}, s{S_T0}, s{S_T1}
s_lshl_b32 s{S_T0}, s{S_T0}, 16
v_lshlrev_b32 v12, 4, v1
v_add_u32 v3, s{S_T0}, v12
v_and_b32 v4, 15, v1
v_lshlrev_b32 v4, 4, v4
v_lshrrev_b32 v7, 5, v1
v_lshl_add_u32 v4, v7, 8, v4
v_add_u32 v4, s{S_T0}, v4
v_mov_b32 v2, 0xdddd
""")
    def ring_consts():
        a(f"v_and_b32 v5, 27, v1\nv_cmp_eq_u32 vcc, 16, v5\nv_mov_b32 v5, 0x3f803f80\ns_nop 0\nv_cndmask_b32 v5, 0, v5, vcc")
        for t in range(4):
            for k in range(8): a(f"v_mov_b32 v{kv(t)[1]+k}, v5")
    def ld(t):
        k, v0_, v1_ = kv(t); off = (t % 2) * 2048
        L = [f"buffer_load_dwordx4 {vr(k,4)}, v3, {sr(S_WS)}, s{S_OFF} offen offset:{off} sc1",
             f"s_mov_b64 exec, {sr(S_MASK,2)}",
             f"buffer_load_dwordx4 {vr(v0_,4)}, v4, {sr(S_WS)}, s{S_OFF} offen offset:{off+1024} sc1",
             f"buffer_load_dwordx4 {vr(v1_,4)}, v4, {sr(S_WS)}, s{S_OFF} offen offset:{off+1536} sc1",
             "s_mov_b64 exec, -1"]
        if t % 2 == 1: L += [f"s_add_u32 s{S_OFF}, s{S_OFF}, 4096", f"s_bitset0_b32 s{S_OFF}, 16"]
        return L
    def first_loads():
        if cfg.arot: a(f"s_and_b32 s{S_OFF}, s{S_RB}, {cfg.arot - 1}\ns_lshl_b32 s{S_OFF}, s{S_OFF}, {16 - int(math.log2(cfg.arot))}")
        else: a(f"s_mov_b32 s{S_OFF}, 0")
        for t in range(3):
            for x in ld(t): a(x)
    def issue(p):
        if p[0] == "f": kvflag_load(); return
        if cfg.noload: return
        if p[0] == "x":
            _, br, k = p
            a(f"s_add_u32 m0, s{S_LB}, {L_X + slot[p]*8192}\ns_nop 0")
            v = 2 if br == "A" else 6; srdi = S_XA if br == "A" else S_XB
            a(f"buffer_load_dwordx4 v{v}, {sr(srdi)}, s{TX[k]} offen lds")
            a(f"buffer_load_dwordx4 v{v+1}, {sr(srdi)}, s{TX[k]} offen offset:1024 lds")
        elif p[0] == "w":
            _, br, ty, k = p
            a(f"s_add_u32 m0, s{S_LB}, {L_W + slot[p]*8192}")
            a(f"s_add_u32 s{S_T0}, s{TW[k]}, {ty*1024}")
            srdi = S_WA if br == "A" else S_WB
            a(f"buffer_load_dwordx4 v4, {sr(srdi)}, s{S_T0} offen lds")
            a(f"buffer_load_dwordx4 v5, {sr(srdi)}, s{S_T0} offen offset:1024 lds")
        else:
            for q in range(2):
                a(f"s_lshl_b32 s{S_T1}, s{S_LB}, 1")
                a(f"s_add_u32 m0, s{S_T1}, {L_H + q*2048}")
                a(f"s_lshr_b32 s{S_T0}, s{S_LB}, 3")
                a(f"s_add_u32 s{S_T0}, s{S_T0}, s{TX[q]}")
                a(f"s_and_b32 s{S_T0}, s{S_T0}, 1023")
                a(f"buffer_load_dwordx4 v8, {sr(S_XB)}, s{S_T0} offen lds")
                a(f"buffer_load_dwordx4 v19, {sr(S_XB)}, s{S_T0} offen offset:1024 lds")
    assert prog[-1] == ("bar", 19) and prog[-2][0] == "wait"
    for k, op in enumerate(prog[:-2]):
        if op[0] == "issue": issue(op[1])
        elif op[0] == "start": stamp(0)
        elif op[0] == "shot":
            ls = a.lab()
            a(f"s_cmp_lg_u32 s{S_SLOT}, {op[1]}\ns_cbranch_scc1 {ls}\ns_call_b64 s[22:23], L_shot\n{ls}:")
        elif op[0] == "wait":
            if prog[k+1][0] != "wait":
                a(f"s_waitcnt vmcnt({sum(cnt(p) for p in seq[op[1]+1:op[2]])})")
        else:
            si = op[1]
            if si in (0, 7, 8, 12): stamp({0: 1, 7: 3, 8: 4, 12: 5}[si])
            a(f"s_barrier   ; stage {stages[si]['n']} landed")
    q_read_and_addr(); ring_consts()
    a(f"""
s_mov_b64 exec, 0xffff
v_cmp_ne_u32 vcc, 1, v13
s_mov_b64 exec, -1
s_cbranch_vccnz L_ld_slow
""")
    first_loads()
    a("s_waitcnt vmcnt(9) lgkmcnt(0)\ns_barrier   ; stage B7 landed")
    stamp(2)
    a("s_branch L_attn_init\nL_ld_slow:\ns_waitcnt vmcnt(0) lgkmcnt(0)\ns_barrier   ; stage B7 landed")
    stamp(2)
    a("s_branch L_attn_poll")
    if early:
        a("L_shot:")
        for p in early: issue(p)
        a("s_setpc_b64 s[22:23]")

    XP = 128
    a(f"""
L_compute:
s_setprio 2
s_cmp_eq_u32 s{S_RB}, 0
s_cselect_b32 s{S_HM}, 15, 0
s_and_b32 s{S_T0}, s{S_WAVE}, 1
s_lshr_b32 s{S_T1}, s{S_WAVE}, 1
v_and_b32 v14, 31, v1
v_lshrrev_b32 v15, 5, v1             ; h
v_bfe_u32 v16, v1, 1, 3
v_xor_b32 v16, v16, v15
v_lshlrev_b32 v16, 4, v16
v_lshl_add_u32 v2, v14, 7, v16
s_lshl_b32 s{S_T2}, s{S_T0}, 12
v_add_u32 v2, s{S_T2}, v2
v_xor_b32 v3, 32, v2
v_xor_b32 v4, 64, v2
v_xor_b32 v5, 96, v2
v_and_b32 v6, 0x7ff, v2
v_xor_b32 v7, 32, v6
v_xor_b32 v8, 64, v6
v_xor_b32 v9, 96, v6
v_bfe_u32 v16, v1, 2, 2              ; r4
v_lshl_add_u32 v17, v15, 3, v16      ; 8h + r4
v_and_b32 v18, 3, v1
v_lshlrev_b32 v18, 3, v18            ; 8*c4
v_bfe_u32 v19, v1, 4, 1
v_lshl_add_u32 v18, v19, 5, v18      ; + 32*nsub
v_bfe_u32 v19, v1, 3, 1              ; (r4>>1)&1
v_xor_b32 v19, s{S_T1}, v19
v_lshl_add_u32 v18, v19, 6, v18
v_lshl_add_u32 v10, v17, 7, v18
v_add_u32 v10, {L_W}, v10
v_add_u32 v11, 0x10000, v10
s_lshl_b32 s{S_T2}, s{S_HG}, 1
s_add_u32 s{S_T2}, s{S_T2}, s{S_T1}
s_lshl_b32 s{S_OBO}, s{S_T2}, 11
s_lshl_b32 s{S_T2}, s{S_T2}, 18
s_lshl_b32 s{S_T3}, s{S_RB}, 1
s_add_u32 s{S_T3}, s{S_T3}, s{S_T0}
s_lshl_b32 s{S_T3}, s{S_T3}, 11
s_add_u32 s{S_T2}, s{S_T2}, s{S_T3}
s_lshl_b32 s{S_T3}, s{S_T3}, 4
s_add_u32 s{S_OBO}, s{S_OBO}, s{S_T3}
s_add_u32 s{S_OBO}, s{S_OBO}, {WS_OB}
v_and_b32 v16, 0x33, v1
v_bfe_u32 v17, v1, 2, 1
v_lshl_or_b32 v16, v17, 3, v16
v_bfe_u32 v17, v1, 3, 1
v_lshl_or_b32 v16, v17, 2, v16
v_lshlrev_b32 v12, 4, v16
v_add_u32 v12, s{S_T2}, v12
v_and_b32 v16, 15, v1
v_lshlrev_b32 v16, 4, v16
v_lshl_add_u32 v16, v15, 8, v16
v_bfe_u32 v17, v1, 4, 1
v_lshl_add_u32 v13, v17, 17, v16
v_add_u32 v13, s{S_T2}, v13
v_lshlrev_b32 v0, 2, v1
s_lshl_b32 s{S_T0}, s{S_WAVE}, 2
s_add_u32 s{S_T0}, s{S_T0}, {L_DONE}
v_mov_b32 v124, s{S_T0}
v_mov_b32 v16, 0
ds_write_b32 v124, v16
s_waitcnt lgkmcnt(0)
""")
    stamp(0)
    lskip = a.lab()
    a(f"""
s_lshl_b32 s{S_T0}, s{S_WAVE}, 4
s_or_b32 s{S_T0}, s{S_T0}, s2
s_cmp_ge_u32 s{S_T0}, 8
s_cbranch_scc1 {lskip}
v_mov_b32 v16, 0
v_mov_b32 v17, 0
v_mov_b32 v18, 0
v_mov_b32 v19, 0
v_lshrrev_b32 v20, 1, v1
v_lshlrev_b32 v20, 7, v20
v_and_b32 v21, 1, v1
v_lshl_add_u32 v20, v21, 4, v20
s_lshl_b32 s{S_T1}, s2, 12
s_add_u32 s{S_T1}, s{S_T1}, {WS_FL}
s_lshl_b32 s{S_T0}, s2, 2
buffer_store_dwordx4 v[16:19], v20, {sr(S_WS)}, s{S_T1} offen sc1
v_mov_b32 v21, 1
s_waitcnt vmcnt(0)
s_mov_b64 exec, 1
buffer_store_dword v21, v16, {sr(S_DBG)}, s{S_T0} offen sc1
s_mov_b64 exec, -1
{lskip}:
""")
    def wread(dst, p, ks):
        sl = slot[p]; base = 10 if sl < 8 else 11; off = (sl % 8) * 8192 + ks * 2048
        return [(f"ds_read_b64_tr_b16 {vr(dst,2)}, v{base} offset:{off}", dst, 2), (f"ds_read_b64_tr_b16 {vr(dst+2,2)}, v{base} offset:{off+512}", dst+2, 2)]
    ACK, ACV, ACQ = 16, 32, 48
    BQ, BK, BV, BH = 188, 204, 220, 236
    KBF, VBF, QBF, NEGM = 96, 104, 104, 112
    MP, MD, MA = 64, 68, 84
    M = []
    R = []
    def addm(d, x, y, first, tag): M.append(dict(txt=mfma(d, x, y, None if first else d), src=(x, y), tag=tag))
    def addr(lst, st):
        for txt, dst, n in lst:
            prev = [i for i, m in enumerate(M) if any(s <= dst < s + 4 for s in m["src"])]
            R.append(dict(txt=txt, stage=st, need=len(M), after=max(prev, default=-1)))
    for g in range(32):
        s, ks = g // 4, g % 4; x = XP + 4*g; b = 64 + 8 * (g % 4)
        addr([(f"ds_read_b128 {vr(x,4)}, v{2+ks} offset:{L_X + slot[('x','A',s)]*8192}", x, 4)] + wread(b, ("w", "A", 1, s), ks), s)
        addm(ACK, b, x, g == 0, ("K", g))
        addr(wread(b + 4, ("w", "A", 2, s), ks), s)
        addm(ACV, x, b + 4, g == 0, ("V", g))
    nkv = len(M)
    for g in range(32):
        s, ks = g // 4, g % 4; b = 64 + 4 * (g % 8)
        addr(wread(b, ("w", "A", 0, s), ks), 8 + s // 2)
        addm(ACQ, b, XP + 4*g, g == 0, ("Q", g))
    for r in R:
        if r["stage"] >= 8: r["after"] = max(r["after"], nkv - 1)
    for g in range(32):
        s, ks = g // 4, g % 4; b = 128 + 20 * (g % 3); st = 12 + s
        x, xh, wq, wk, wv = b, b+4, b+8, b+12, b+16
        addr([(f"ds_read_b128 {vr(x,4)}, v{2+ks} offset:{L_X + slot[('x','B',s)]*8192}", x, 4)] + wread(wq, ("w", "B", 0, s), ks), st)
        addm(BQ, wq, x, g == 0, ("B", g))
        addr(wread(wk, ("w", "B", 1, s), ks), st)
        addm(BK, wk, x, g == 0, ("B", g))
        addr(wread(wv, ("w", "B", 2, s), ks), st)
        addm(BV, x, wv, g == 0, ("B", g))
        addr([(f"ds_read_b128 {vr(xh,4)}, v{6+ks} offset:{L_H + s*2048}", xh, 4)], st)
        M.append(dict(txt="@" + mfma(BH, wk, xh, BH if g else None) + "@" + mfma(BH, xh, wv, BH if g else None), src=(wk, xh, wv), tag=("B", g)))

    fill = Filler()
    def q_epilogue_fillers():
        S0, S1 = 32, 64
        fill.add(12)
        for i in range(16): fill.add(f"v_mul_f32 v{ACQ+i}, s{S_C}, v{ACQ+i}")
        for i in range(8): fill.add(f"v_cvt_pk_bf16_f32 v{QBF+i}, v{ACQ+2*i}, v{ACQ+2*i+1}")
        fill.add(2)
        fill.add(mfma(S0, KBF, QBF, None)); fill.add(mfma(S1, KBF+4, QBF+4, None))
        fill.add(12)
        for e, S in enumerate((S0, S1)):
            m = NEGM + e
            fill.add(f"v_max3_f32 v{m}, v{S}, v{S+1}, v{S+2}")
            for i in range(3, 15, 2): fill.add(f"v_max3_f32 v{m}, v{m}, v{S+i}, v{S+i+1}")
            fill.add(f"v_max_f32 v{m}, v{m}, v{S+15}")
            fill.add(f"v_mov_b32 v{S}, v{m}")
        fill.add(2)
        for e, S in enumerate((S0, S1)): fill.add(f"v_permlane32_swap_b32 v{NEGM+e}, v{S}")
        fill.add(2)
        for e, S in enumerate((S0, S1)):
            fill.add(f"v_max_f32 v{NEGM+e}, v{NEGM+e}, v{S}")
            fill.add(f"v_sub_f32 v{NEGM+e}, 0, v{NEGM+e}")
        fill.add(f"""
s_and_b32 s{S_T0}, s{S_WAVE}, 1
s_lshr_b32 s{S_T1}, s{S_WAVE}, 1
s_lshl_b32 s{S_T1}, s{S_T1}, 2
s_add_u32 s{S_T0}, s{S_T0}, s{S_T1}
s_lshl_b32 s{S_T0}, s{S_T0}, 6
v_add_u32 v116, s{S_T0}, v1
v_lshlrev_b32 v117, 2, v116
v_lshlrev_b32 v116, 4, v116
v_add_u32 v117, {L_MX}, v117
v_add_u32 v116, {L_QX}, v116
QX
""")
    def mask_fillers():
        fill.add(f"""
v_mov_b32 v118, 0x1fe
v_mov_b32 v119, 0
v_lshlrev_b64 v[118:119], v14, v[118:119]
v_lshlrev_b32 v120, 2, v15
v_lshrrev_b64 v[118:119], v120, v[118:119]
v_alignbit_b32 v119, v119, v118, 8
v_not_b32 v119, v119
v_not_b32 v118, v118
v_or_b32 v118, s{S_HM}, v118
v_mov_b32 v120, 0x07070303
""")
        for aa in range(4):
            for b in range(4): fill.add(f"v_bfe_i32 v{MD+4*aa+b}, v119, {8*aa+b}, 1\nv_lshlrev_b32 v{MD+4*aa+b}, 23, v{MD+4*aa+b}")
        for b in range(4): fill.add(f"v_bfe_i32 v{MP+b}, v118, {b}, 1\nv_lshlrev_b32 v{MP+b}, 23, v{MP+b}")
        for k in range(8): fill.add(f"v_perm_b32 v{MA+k}, v{MD+2*k+1}, v{MD+2*k}, v120")
        for k in range(2): fill.add(f"v_perm_b32 v{MA+8+k}, v{MP+2*k+1}, v{MP+2*k}, v120")

    st = dict(ri=0, issued=[], done=0, bar=-1, qx=None)
    def emit(t):
        if cfg.nocomp in (1, 2) and t.startswith("@"): return
        if cfg.nocomp == 1 and (t.startswith("v_mfma") or t.startswith("ds_read")): return
        if cfg.nocomp == 2 and t.startswith("v_mfma"): return
        if cfg.nocomp == 3 and t.startswith("ds_read"): return
        a(t); fill.tick()
    def wait_upto(n):
        if st["done"] < n:
            k = min(15, len(st["issued"]) - n); emit(f"s_waitcnt lgkmcnt({k})"); st["done"] = len(st["issued"]) - k
    PUB = 12 + cfg.flag_stage
    def barrier(s):
        idx = [i for i, x in enumerate(st["issued"]) if x <= s - 2]
        if idx: wait_upto(max(idx) + 1)
        if st["qx"] is not None: wait_upto(st["qx"])
        if s == PUB:
            ls = a.lab()
            a("s_waitcnt vmcnt(0)")
            a(f"s_cmp_lg_u32 s{S_WAVE}, 0\ns_cbranch_scc1 {ls}")
            poll(0, 8, S_DBG, 12, preloaded=True)
            a(f"{ls}:")
            stamp(4)
        emit(f"s_barrier   ; {stages[s]['n']}")
        if s == 0: stamp(1)
        if cfg.tailst == 2 and s >= 12: a(f"s_memtime s[{4+2*(s-12)}:{5+2*(s-12)}]")
        if s == PUB:
            ls = a.lab()
            a(f"s_cmp_lg_u32 s{S_WAVE}, 0\ns_cbranch_scc1 {ls}")
            a(f"s_lshl_b32 s{S_T2}, s{S_HG}, 5\ns_add_u32 s{S_T2}, s{S_T2}, s{S_RB}\ns_lshl_b32 s{S_T2}, s{S_T2}, 7\ns_add_u32 s{S_T2}, s{S_T2}, {FL_KV}")
            a(f"v_mov_b32 v12, 1\ns_mov_b64 exec, 1\nbuffer_store_dword v12, v0, {sr(S_WS)}, s{S_T2} offen sc1\ns_mov_b64 exec, -1")
            a(f"{ls}:")
        st["bar"] = s
    pos = {}
    def issue_reads(i, lim):
        n = 0
        while st["ri"] < len(R) and R[st["ri"]]["need"] <= lim and R[st["ri"]]["after"] <= i:
            r = R[st["ri"]]
            if r["stage"] > st["bar"]: barrier(r["stage"])
            wait_upto(len(st["issued"]) - 14)
            emit(r["txt"]); st["issued"].append(r["stage"]); pos[st["ri"]] = len(st["issued"]); st["ri"] += 1; n += 1
        return n
    if cfg.cpf: a("s_waitcnt vmcnt(0)")
    issue_reads(-1, cfg.la - 1)
    for i, m in enumerate(M):
        needed = [k for k, r in enumerate(R) if r["need"] == i]
        if needed:
            assert max(needed) < st["ri"], (i, m)
            wait_upto(pos[max(needed)])
        emit(m["txt"])
        if m["tag"] == ("V", 31):
            stamp(2)
            a("s_nop 9")
            a(f"s_mov_b32 s{S_T2}, 0x20000")
            for k in range(8): a(f"v_cvt_pk_bf16_f32 v{KBF+k}, v{ACK+2*k}, v{ACK+2*k+1}")
            if cfg.nostore: a("s_mov_b64 exec, 1")
            a(f"buffer_store_dwordx4 {vr(KBF,4)}, v12, {sr(S_WS)}, 0 offen sc1")
            a(f"buffer_store_dwordx4 {vr(KBF+4,4)}, v12, {sr(S_WS)}, s{S_T2} offen sc1")
            for k in range(8): a(f"v_cvt_pk_bf16_f32 v{VBF+k}, v{ACV+2*k}, v{ACV+2*k+1}")
            a(f"buffer_store_dwordx4 {vr(VBF,4)}, v13, {sr(S_WS)}, 0 offen offset:1024 sc1")
            a(f"buffer_store_dwordx4 {vr(VBF+4,4)}, v13, {sr(S_WS)}, 0 offen offset:1536 sc1")
            if cfg.nostore: a("s_mov_b64 exec, -1")
            a(f"buffer_load_dword v12, v0, {sr(S_DBG)}, 0 offen sc1")
        n = issue_reads(i, i + cfg.la)
        if m["tag"] == ("Q", 31):
            stamp(3)
            q_epilogue_fillers(); mask_fillers()
            a(f"s_bitcmp1_b32 s{S_WAVE}, 0\ns_cbranch_scc1 L_bodd")
            fork = len(a.L)
        if m["tag"][0] == "B":
            fill.take(a, cfg.gap - n)
            if fill.q and fill.q[0] == "QX":
                fill.q.pop(0)
                for t in (f"ds_write_b128 v116, {vr(QBF,4)}", f"ds_write_b128 v116, {vr(QBF+4,4)} offset:2048",
                          f"ds_write_b32 v117, v{NEGM}", f"ds_write_b32 v117, v{NEGM+1} offset:512"):
                    wait_upto(len(st["issued"]) - 14); emit(t); st["issued"].append(99)
                st["qx"] = len(st["issued"])
                assert st["bar"] + 1 <= 18
    assert st["ri"] == len(R) and st["bar"] == len(stages) - 1 and st["qx"] is not None
    fill.flush(a)

    QB, KB, KHB, VB, VHB = 104, 116, 128, 136, 144
    SD, SP, OO = (32, 48), (168, 188), (204, 220)
    PD, PP = (148, 236), (156, 244)
    Z = (160, 248)
    kvflag_load()
    q_read_and_addr()
    shared = a.L[fork:]; del a.L[fork:]
    import re
    labs = [l[:-1] for l in shared if l.endswith(":") and not l.startswith(";")]
    for par in (0, 1):
        if par: a("L_bodd:")
        for l in shared:
            if l.strip().startswith("@"): l = "    " + l.strip().split("@")[1 + par]
            if par:
                for lb in labs: l = re.sub(rf"\b{lb}\b", lb + "_o", l)
            a.L.append(l)
        a(f"""
s_lshr_b32 s{S_T0}, s{S_WAVE}, 1
s_lshl_b32 s{S_T1}, s{S_T0}, 11
s_add_u32 s{S_T1}, s{S_T1}, {L_HX}
s_lshl_b32 s{S_T0}, s{S_T0}, 9
s_add_u32 s{S_T0}, s{S_T0}, {L_HX + 4096}
v_lshlrev_b32 v11, 3, v1
v_add_u32 v11, s{S_T0}, v11
v_xor_b32 v126, 4, v124
v_mov_b32 v125, 1
""")
        if par == 0:
            a(f"v_add_u32 v10, s{S_T1}, v12")
            for k in range(8): a(f"v_cvt_pk_bf16_f32 v{KHB+k}, v{BH+2*k}, v{BH+2*k+1}")
            a(f"ds_write_b128 v10, {vr(KHB,4)}\nds_write_b128 v10, {vr(KHB+4,4)} offset:1024")
        else:
            a(f"v_xor_b32 v10, 128, v12\nv_add_u32 v10, s{S_T1}, v10")
            for k in range(4): a(f"v_cvt_pk_bf16_f32 v{VHB+(k^2)}, v{BH+2*k}, v{BH+2*k+1}")
            a(f"ds_write_b64 v11, {vr(VHB+2,2)}")
        for k in range(8): a(f"v_cvt_pk_bf16_f32 v{QB+k}, v{BQ+2*k}, v{BQ+2*k+1}")
        a("s_waitcnt lgkmcnt(0)\nds_write_b32 v124, v125")
        stamp(5)
        for k in range(8): a(f"v_cvt_pk_bf16_f32 v{KB+k}, v{BK+2*k}, v{BK+2*k+1}")
        for k in range(4): a(f"v_cvt_pk_bf16_f32 v{VB+k}, v{BV+2*k}, v{BV+2*k+1}")
        a(mfma(SD[0], KB, QB, MD))
        for k in range(4, 8): a(f"v_cvt_pk_bf16_f32 v{VB+k}, v{BV+2*k}, v{BV+2*k+1}")
        a(mfma(SD[1], KB+4, QB+4, MD))
        l0, l1 = a.lab(), a.lab()
        a(f"""
s_mov_b32 s{S_SPIN}, {cfg.spin}
{l0}:
ds_read_b32 v125, v126
s_waitcnt lgkmcnt(0)
v_cmp_ne_u32 vcc, 1, v125
s_cbranch_vccz {l1}
s_sub_u32 s{S_SPIN}, s{S_SPIN}, 1
s_cmp_lg_u32 s{S_SPIN}, 0
s_cbranch_scc1 {l0}
{l1}:
""")
        if par == 0:
            a(f"ds_read_b64 {vr(VHB,2)}, v11\nv_mov_b32 v{VHB+2}, 0\nv_mov_b32 v{VHB+3}, 0\ns_branch L_bjoin")
        else:
            a(f"ds_read_b128 {vr(KHB,4)}, v10\nds_read_b128 {vr(KHB+4,4)}, v10 offset:1024")
    a("L_bjoin:\ns_waitcnt lgkmcnt(0)")
    a(mfma(SP[0], KHB, QB, MP))
    a(mfma(SP[1], KHB+4, QB+4, MP))
    for e in range(2): a(f"v_mov_b32 v{PP[e]+2}, 0\nv_mov_b32 v{PP[e]+3}, 0")
    for e in range(2):
        for b in range(4): a(f"v_max3_f32 v{Z[e]+b}, v{SD[e]+b}, v{SD[e]+4+b}, v{SD[e]+8+b}")
    for e in range(2):
        z = Z[e]
        for b in range(4): a(f"v_max3_f32 v{z+b}, v{z+b}, v{SD[e]+12+b}, v{SP[e]+b}")
        a(f"v_max3_f32 v{z+4}, v{z}, v{z+1}, v{z+2}\nv_max_f32 v{z+4}, v{z+4}, v{z+3}\nv_mov_b32 v{z+5}, v{z+4}")
    a("s_nop 1")
    for e in range(2): a(f"v_permlane32_swap_b32 v{Z[e]+4}, v{Z[e]+5}")
    a("s_nop 1")
    for e in range(2):
        z = Z[e]
        a(f"v_max_f32 v{z+4}, v{z+4}, v{z+5}\nv_mul_f32 v{z+4}, s{S_C}, v{z+4}")
        for b in range(4): a(f"v_fma_f32 v{z+b}, v{z+b}, s{S_C}, -v{z+4}")
        for b in range(4): a(f"v_exp_f32 v{z+b}, v{z+b}")
    for e in range(2):
        z = Z[e]
        a(f"v_add_f32 v{z+4}, v{z}, v{z+1}\nv_add_f32 v{z+5}, v{z+2}, v{z+3}\nv_add_f32 v{z+4}, v{z+4}, v{z+5}\nv_mov_b32 v{z+5}, v{z+4}")
    a("s_nop 1")
    for e in range(2): a(f"v_permlane32_swap_b32 v{Z[e]+4}, v{Z[e]+5}")
    a("s_nop 1")
    for e in range(2): a(f"v_add_f32 v{Z[e]+4}, v{Z[e]+4}, v{Z[e]+5}")
    for e in range(2): a(f"v_rcp_f32 v{Z[e]+4}, v{Z[e]+4}")
    a("s_nop 0")
    for e in range(2):
        z = Z[e]
        for b in range(4): a(f"v_mul_f32 v{z+b}, v{z+b}, v{z+4}")
        a(f"v_cvt_pk_bf16_f32 v{z}, v{z}, v{z+1}\nv_cvt_pk_bf16_f32 v{z+1}, v{z+2}, v{z+3}")
        for k in range(8): a(f"v_bfi_b32 v{PD[e]+k}, v{MA+k}, 0, v{z+(k&1)}")
        for k in range(2): a(f"v_bfi_b32 v{PP[e]+k}, v{MA+8+k}, 0, v{z+k}")
        a(mfma(OO[e], VB, PD[e], None)); a(mfma(OO[e], VB+4, PD[e]+4, OO[e])); a(mfma(OO[e], VHB, PP[e], OO[e]))
    for k in range(4): a(f"v_cvt_pk_bf16_f32 v{QB+k}, v{OO[0]+2*k}, v{OO[0]+2*k+1}")
    a("s_nop 7")
    for k in range(4): a(f"v_cvt_pk_bf16_f32 v{QB+4+k}, v{OO[1]+8+2*k}, v{OO[1]+8+2*k+1}")

    live = set()
    for p, k in slot.items():
        if stage_of[p] >= 18: live.add((L_X if p[0] == "x" else L_W) + k * 8192)
    live |= {L_H, L_H + 8192, L_QX}
    cand = {reg: [i for i in range(4) if reg + i * 16384 + 8192 not in live] for reg in (L_WOB, L_WOA)}
    PF = [(S_WOB, L_WOB), (S_WOA, L_WOA)]
    if len(cand[L_WOA]) > len(cand[L_WOB]): PF.reverse()
    PF0 = cand[PF[0][1]]; assert PF0
    def done_check():
        l0, l1 = a.lab(), a.lab()
        a(f"""
; the phase-1 LDS image must be dead before the weight tiles overwrite it
v_and_b32 v8, 3, v1
v_lshlrev_b32 v8, 2, v8
v_add_u32 v8, {L_DONE}, v8
s_mov_b32 s{S_SPIN}, {cfg.spin}
{l0}:
ds_read_b32 v7, v8
s_waitcnt lgkmcnt(0)
v_cmp_ne_u32 vcc, 1, v7
s_cbranch_vccz {l1}
s_sub_u32 s{S_SPIN}, s{S_SPIN}, 1
s_cmp_lg_u32 s{S_SPIN}, 0
s_cbranch_scc1 {l0}
{l1}:
""")
    ring_consts()
    stamp(6)
    a("L_attn_poll:")
    poll(9, 16, S_WS, 13, preloaded=True)
    stamp(7)
    a("L_attn_start:")
    first_loads()
    lp = a.lab()
    a(f"""
s_cmp_ge_u32 s{S_WAVE}, 4
s_cbranch_scc1 L_attn_init
; O_B out; the O_A slots this wave fills later are marked "not written yet" (all-ones words)
s_lshl_b32 s{S_OAO}, s{S_RB}, 6
s_lshl_b32 s{S_T1}, s{S_HG}, 2
s_add_u32 s{S_OAO}, s{S_OAO}, s{S_T1}
s_add_u32 s{S_OAO}, s{S_OAO}, s{S_WAVE}
s_lshl_b32 s{S_OAO}, s{S_OAO}, 10
s_add_u32 s{S_OAO}, s{S_OAO}, {WS_OA}
s_add_u32 s{S_T1}, s{S_OAO}, 32768
v_mov_b32 v120, -1
v_mov_b32 v121, -1
v_mov_b32 v122, -1
v_mov_b32 v123, -1
buffer_store_dwordx4 {vr(QB,4)}, v12, {sr(S_WS)}, s{S_OBO} offen sc1
buffer_store_dwordx4 {vr(QB+4,4)}, v12, {sr(S_WS)}, s{S_OBO} offen offset:1024 sc1
buffer_store_dwordx4 v[120:123], v12, {sr(S_WS)}, s{S_OAO} offen sc1
buffer_store_dwordx4 v[120:123], v12, {sr(S_WS)}, s{S_T1} offen sc1
""")
    done_check()
    a(f"""
s_setprio 2
s_mov_b32 s{S_EV}, {sum(1 << k for k in set([3, 4, cfg.prio_iter, 7, 8]))}
s_branch {lp}
L_attn_init:
s_setprio 1
s_mov_b32 s{S_EV}, {sum(1 << k for k in [1, 3, 4, 5, 6, 7, 8])}
{lp}:
s_mov_b32 s{S_CUR}, s{PF[0][0]}
s_mov_b32 s{S_CUR+1}, s{PF[0][0]+1}
s_mov_b32 s{S_CUR+2}, s{PF[0][0]+2}
s_mov_b32 s{S_CUR+3}, 0x00020000
s_bitcmp1_b32 s{S_RBO}, 0
s_cselect_b32 s{S_PP}, {PF0[0]}, {PF0[-1]}
s_lshl_b32 s{S_PP}, s{S_PP}, 14
s_lshl_b32 s{S_T0}, s{S_WAVE}, 11
s_add_u32 s{S_PP}, s{S_PP}, s{S_T0}
s_mov_b32 s{S_PREG}, {PF[0][1]}
s_lshl_b32 s{S_T0}, s{S_NB}, 7
v_bfe_u32 v5, v1, 4, 1
v_lshlrev_b32 v5, 2, v5
v_and_b32 v6, 7, v1
v_xor_b32 v5, v5, v6
v_lshlrev_b32 v5, 4, v5
v_lshrrev_b32 v6, 3, v1
v_lshl_add_u32 v5, v6, 10, v5
v_add_u32 v5, s{S_T0}, v5
v_add_u32 v6, 7168, v5
s_mov_b32 s{S_IT}, 0
s_waitcnt lgkmcnt(0)
""")
    for q in range(2):
        for k in range(16): a(f"v_mov_b32 v{NM[q]+k}, v{AM+q}")
        for k in range(9): a(f"v_mov_b32 v{O[q]+k}, 0")
    for k in range(8): a(f"v_mov_b32 v{S[1]+8+k}, 0")
    a("s_waitcnt vmcnt(6)")
    a(mfma(S[0], kv(0)[0], AQ[0], NM[0]))
    a("s_nop 11")
    stamp(8)
    a(".p2align 3")
    a("L_attn_loop:")
    for u in range(8):
        t, q = u // 2, u % 2
        c = S[u % 2]; o = S[(u + 1) % 2]
        tp, qp = (u - 1) // 2, (u - 1) % 2
        tn, qn = (u + 1) // 2, (u + 1) % 2
        e = lambda i: a(f"v_exp_f32 v{c+i}, v{c+i}")
        e(0); e(1)
        a(f"v_smfmac_f32_32x32x32_bf16 {vr(O[qp],16)}, {vr(kv(tp)[2],4)}, {vr(o+8,8)}, v2")
        if q == 0:
            for x in ld(t + 3): a(x)
            if t == 0:
                a(f"s_add_u32 m0, s{S_PP}, s{S_PREG}")
                a(f"s_lshl_b32 s{S_T0}, s{S_PP}, 3")
                a(f"buffer_load_dwordx4 v5, {sr(S_CUR)}, s{S_T0} offen lds")
                a(f"buffer_load_dwordx4 v6, {sr(S_CUR)}, s{S_T0} offen offset:1024 lds")
                a(f"s_add_u32 s{S_PP}, s{S_PP}, 16384")
                a(f"s_bitset0_b32 s{S_PP}, 16")
        e(2); e(3)
        if q == 1: a(f"s_waitcnt vmcnt({6 if t == 3 else 8})")
        e(4)
        a(mfma(o, kv(tn)[0], AQ[qn], NM[qn]))
        for i in range(5, 11): e(i)
        a(f"v_smfmac_f32_32x32x32_bf16 {vr(O[q],16)}, {vr(kv(t)[1],4)}, {vr(c,8)}, v2")
        for i in range(11, 16): e(i)
    OFB = [80 + 4*j for j in range(4)] + [208 + 4*j for j in range(12)]
    OFA = [64 + 4*j for j in range(16)]
    S_G = [72, 73, 74, 75]
    def ofrag_base(ws_off):
        a(f"""
s_lshl_b32 s{S_G[0]}, s{S_RBO}, 16
s_and_b32 s{S_T0}, s{S_WAVE}, 1
s_lshl_b32 s{S_T0}, s{S_T0}, 15
s_add_u32 s{S_G[0]}, s{S_G[0]}, s{S_T0}
s_and_b32 s{S_T0}, s{S_WAVE}, 2
s_lshl_b32 s{S_T0}, s{S_T0}, 13
s_add_u32 s{S_G[0]}, s{S_G[0]}, s{S_T0}
s_add_u32 s{S_G[0]}, s{S_G[0]}, {ws_off}
s_add_u32 s{S_G[1]}, s{S_G[0]}, 4096
s_add_u32 s{S_G[2]}, s{S_G[0]}, 8192
s_add_u32 s{S_G[3]}, s{S_G[0]}, 12288
""")
    def ofrag_loads(dst, g0=0, g1=4):
        for j in range(4*g0, 4*g1):
            a(f"buffer_load_dwordx4 {vr(dst[j],4)}, v12, {sr(S_WS)}, s{S_G[j//4]} offen offset:{(j%4)*1024} sc1")
    evs = list(range(1, 9))
    assert cfg.prio_iter >= 5
    l0, l1, l2, l3, l4, l5 = [a.lab() for _ in range(6)]
    ITST = ("s_memtime s[90:91]\n" + "".join(f"s_mov_b32 s{S_STAMP+k}, s{S_STAMP+k+1}\n" for k in range(7)) + f"s_waitcnt lgkmcnt(0)\ns_mov_b32 s{S_STAMP+7}, s90") if cfg.tailst == 4 else ""
    def obflag_load():
        a(f"""
s_bfe_u32 s{S_T0}, s{S_WAVE}, 0x10001
s_lshl_b32 s{S_T0}, s{S_T0}, 7
s_add_u32 s{S_T0}, s{S_T0}, s{S_RBO}
s_lshl_b32 s{S_T0}, s{S_T0}, 7
s_add_u32 s{S_T0}, s{S_T0}, {FL_KV + 16}
v_lshrrev_b32 v8, 2, v1
v_lshlrev_b32 v8, 12, v8
v_and_b32 v7, 3, v1
v_lshl_add_u32 v8, v7, 2, v8
v_add_u32 v8, s{S_T0}, v8
s_mov_b64 exec, 0xffff
buffer_load_dword v7, v8, {sr(S_WS)}, 0 offen sc1
s_mov_b64 exec, -1
""")
    a(f"""
{ITST}
s_add_u32 s{S_IT}, s{S_IT}, 1
s_bitcmp0_b32 s{S_EV}, s{S_IT}
s_cbranch_scc1 L_attn_loop
s_cmp_eq_u32 s{S_IT}, 8
s_cbranch_scc1 L_attn_done
s_cmp_lg_u32 s{S_IT}, 4
s_cbranch_scc1 {l0}
s_mov_b32 s{S_CUR}, s{PF[1][0]}
s_mov_b32 s{S_CUR+1}, s{PF[1][0]+1}
s_mov_b32 s{S_PREG}, {PF[1][1]}
s_branch L_attn_loop
{l0}:
s_cmp_ge_u32 s{S_WAVE}, 4
s_cbranch_scc1 L_ev_hi
s_cmp_lg_u32 s{S_IT}, 3
s_cbranch_scc1 {l1}
s_lshl_b32 s{S_T0}, s{S_HG}, 5
s_add_u32 s{S_T0}, s{S_T0}, s{S_RB}
s_lshl_b32 s{S_T0}, s{S_T0}, 5
s_add_u32 s{S_T0}, s{S_T0}, s{S_WAVE}
s_lshl_b32 s{S_T0}, s{S_T0}, 2
s_add_u32 s{S_T0}, s{S_T0}, {FL_KV + 16}
v_mov_b32 v7, 1
s_waitcnt vmcnt(0)
s_mov_b64 exec, 1
buffer_store_dword v7, v12, {sr(S_WS)}, s{S_T0} offen sc1
s_mov_b64 exec, -1
s_branch L_attn_loop
{l1}:
s_cmp_lg_u32 s{S_IT}, {cfg.prio_iter}
s_cbranch_scc1 {l4}
s_setprio 0
{l4}:
s_cmp_lg_u32 s{S_IT}, 7
s_cbranch_scc1 L_attn_loop
""")
    obflag_load()
    a(f"""
s_branch L_attn_loop
L_ev_hi:
s_cmp_lg_u32 s{S_IT}, 1
s_cbranch_scc1 {l2}
""")
    done_check()
    a(f"""
s_branch L_attn_loop
{l2}:
s_cmp_lg_u32 s{S_IT}, 3
s_cbranch_scc1 {l3}
""")
    obflag_load(); ofrag_base(WS_OB)
    a(f"""
s_branch L_attn_loop
{l3}:
s_cmp_eq_u32 s{S_IT}, 6
s_cbranch_scc1 L_ev_hi6
s_cmp_eq_u32 s{S_IT}, 7
s_cbranch_scc1 L_ev_hi7
; the flag words fetched two iterations ago have landed (older than loads already waited for)
s_mov_b64 exec, 0xffff
v_cmp_ne_u32 vcc, 1, v7
s_mov_b64 exec, -1
s_cbranch_vccz L_ev_hi5
""")
    poll(8, 16, S_WS, 7)
    def ob_part(j0, j1):
        for j in range(j0, j1):
            a(f"buffer_load_dwordx4 {vr(OFB[j],4)}, v12, {sr(S_WS)}, s{S_G[j//4]} offen offset:{(j%4)*1024} sc1")
        a("s_branch L_attn_loop")
    a("L_ev_hi5:"); ob_part(0, 5)
    a("L_ev_hi6:"); ob_part(5, 11)
    a("L_ev_hi7:"); ob_part(11, 16)
    a(f"""
L_attn_done:
s_setprio 0
v_smfmac_f32_32x32x32_bf16 {vr(O[1],16)}, {vr(kv(3)[2],4)}, {vr(S[1]+8,8)}, v2
""")
    stamp(9)
    thr = f32(2.0**40) if not cfg.force_fallback else f32(2.0**-3)
    a(f"""
s_and_b32 s{S_T0}, s{S_WAVE}, 3
s_mul_i32 s{S_T0}, s{S_T0}, 4608
s_add_u32 s{S_T0}, s{S_T0}, {L_CB}
v_add_u32 v11, s{S_T0}, v12
v_lshlrev_b32 v10, 2, v1
v_add_u32 v10, s{S_T0}, v10
s_lshl_b32 s{S_T1}, s{S_WAVE}, 2
s_add_u32 s{S_T1}, s{S_T1}, {L_FB}
v_mov_b32 v13, s{S_T1}
v_and_b32 v14, 7, v1
v_lshlrev_b32 v14, 2, v14
v_add_u32 v14, {L_FB}, v14
s_mov_b32 s{S_T2}, {thr}
v_max3_f32 v9, |v{O[0]}|, |v{O[0]+1}|, |v{O[0]+2}|
v_max3_f32 v9, v9, |v{O[0]+3}|, |v{O[0]+4}|
v_max3_f32 v9, v9, |v{O[0]+5}|, |v{O[0]+6}|
v_max3_f32 v9, v9, |v{O[0]+7}|, |v{O[1]}|
v_max3_f32 v9, v9, |v{O[1]+1}|, |v{O[1]+2}|
v_max3_f32 v9, v9, |v{O[1]+3}|, |v{O[1]+4}|
v_max3_f32 v9, v9, |v{O[1]+5}|, |v{O[1]+6}|
v_max_f32 v9, v9, |v{O[1]+7}|
v_mul_f32 v9, {f32(2.0**-80)}, v9
v_max3_f32 v9, v9, v{O[0]+8}, v{O[1]+8}
v_cmp_nlt_f32 vcc, v9, s{S_T2}
s_nop 1
s_cmp_lg_u64 vcc, 0
s_cselect_b32 s{S_T1}, 1, 0
v_mov_b32 v9, s{S_T1}
ds_write_b32 v13, v9
s_cmp_lt_u32 s{S_WAVE}, 4
s_cbranch_scc1 L_cmb1
ds_write_b128 v11, {vr(O[0],4)}
ds_write_b128 v11, {vr(O[0]+4,4)} offset:1024
ds_write_b128 v11, {vr(O[1],4)} offset:2048
ds_write_b128 v11, {vr(O[1]+4,4)} offset:3072
ds_write_b32 v10, v{O[0]+8} offset:4096
ds_write_b32 v10, v{O[1]+8} offset:4352
L_cmb1:
s_waitcnt lgkmcnt(0)
s_barrier
ds_read_b32 v9, v14
s_cmp_ge_u32 s{S_WAVE}, 4
s_cbranch_scc1 L_cmb2
ds_read_b128 {vr(80,4)}, v11
ds_read_b128 {vr(84,4)}, v11 offset:1024
ds_read_b128 {vr(88,4)}, v11 offset:2048
ds_read_b128 {vr(92,4)}, v11 offset:3072
ds_read_b32 v116, v10 offset:4096
ds_read_b32 v117, v10 offset:4352
L_cmb2:
s_waitcnt lgkmcnt(0)
v_cmp_ne_u32 vcc, 0, v9
s_barrier
s_cmp_lg_u64 vcc, 0
s_cselect_b32 s{S_T1}, 1, 0
s_andn2_b32 s{S_T1}, s{S_T1}, s{S_PASS}
s_cbranch_scc1 L_fallback
""")
    stamp(10)
    def oproj_addr(lwo):
        a(f"""
s_bfe_u32 s{S_T1}, s{S_WAVE}, 0x10001
v_lshrrev_b32 v15, 5, v1             ; h
v_bfe_u32 v16, v1, 2, 2              ; r4
v_lshl_add_u32 v17, v15, 2, v16      ; 4h + r4
v_and_b32 v18, 1, v1
v_lshlrev_b32 v18, 5, v18            ; 32B * (c4&1)
v_bfe_u32 v19, v1, 4, 1
v_lshl_add_u32 v18, v19, 4, v18      ; + 16B * g'
v_bfe_u32 v19, v1, 1, 1
v_lshl_add_u32 v18, v19, 3, v18      ; + 8B * (c4>>1)
v_bfe_u32 v19, v1, 3, 1
v_xor_b32 v19, s{S_T1}, v19
v_lshl_add_u32 v18, v19, 6, v18
v_lshl_add_u32 v20, v17, 7, v18
s_lshl_b32 s{S_T2}, s{S_T1}, 15
s_add_u32 s{S_T2}, s{S_T2}, {lwo}
v_add_u32 v20, s{S_T2}, v20
v_xor_b32 v21, 64, v20
v_and_b32 v22, 31, v1
s_lshl_b32 s{S_T3}, s{S_RBO}, 17
s_lshl_b32 s{S_T1}, s{S_T1}, 6
s_add_u32 s{S_T3}, s{S_T3}, s{S_T1}
s_lshl_b32 s{S_T1}, s{S_NB}, 7
s_add_u32 s{S_T3}, s{S_T3}, s{S_T1}
s_and_b32 s{S_T0}, s{S_WAVE}, 1
""")
    AK, AS = 32, 48
    def oproj_finish(vw, vrd):
        a("s_nop 10")
        if cfg.tailst == 3: stamp(1)
        for k in range(4): a(f"ds_write_b128 v{vw}, {vr(AS+4*k,4)} offset:{k*1024}")
        a("s_waitcnt lgkmcnt(0)")
        if cfg.tailst == 3: stamp(2)
        a("s_barrier")
        if cfg.tailst == 3: stamp(3)
        for k in range(4): a(f"ds_read_b128 {vr(AS+4*k,4)}, v{vrd} offset:{k*1024}")
        for k in range(4):
            a(f"s_waitcnt lgkmcnt({3-k})")
            for i in range(4): a(f"v_add_f32 v{AK+4*k+i}, v{AK+4*k+i}, v{AS+4*k+i}")
            for i in range(2): a(f"v_cvt_pk_bf16_f32 v{24+2*k+i}, v{AK+4*k+2*i}, v{AK+4*k+2*i+1}")
            if cfg.tailst == 3 and k == 1: stamp(4)
            if k % 2: a(f"buffer_store_dwordx4 {vr(24+2*(k-1),4)}, v22, {sr(S_OUT)}, s{S_T3} offen offset:{8*(k-1)}")
            if cfg.tailst == 3 and k == 1: stamp(5)

    a(f"s_cmp_ge_u32 s{S_WAVE}, 4\ns_cbranch_scc1 L_oprojB")
    a(f"""
v_add_f32 v116, v116, v{O[0]+8}
v_add_f32 v117, v117, v{O[1]+8}
v_rcp_f32 v116, v116
v_rcp_f32 v117, v117
s_add_u32 s{S_T1}, s{S_OAO}, 32768
""")
    for q in range(2):
        for k in range(8): a(f"v_add_f32 v{80+8*q+k}, v{80+8*q+k}, v{O[q]+k}")
        for k in range(8): a(f"v_mul_f32 v{80+8*q+k}, v{80+8*q+k}, v{116+q}")
        for k in range(4): a(f"v_cvt_pk_bf16_f32 v{120+4*q+k}, v{80+8*q+2*k}, v{80+8*q+2*k+1}")
        for k in range(4): a(f"v_min_u32 v{120+4*q+k}, -2, v{120+4*q+k}")
        a(f"buffer_store_dwordx4 {vr(120+4*q,4)}, v12, {sr(S_WS)}, s{S_OAO if q == 0 else S_T1} offen sc1")
    oproj_addr(L_WOA)
    WF = 128
    a(f"""
v_lshlrev_b32 v22, 11, v22
v_lshl_add_u32 v22, v15, 5, v22
s_lshl_b32 s{S_T0}, s{S_T0}, 16
s_add_u32 s{S_T3}, s{S_T3}, s{S_T0}
s_lshl_b32 s{S_T0}, s{S_WAVE}, 12
v_add_u32 v10, s{S_T0}, v12
v_xor_b32 v11, 0x2000, v10
""")
    ofrag_base(WS_OA)
    stamp(11)
    a(f"s_mov_b64 exec, 0xffff\nv_cmp_ne_u32 vcc, 1, v7\ns_mov_b64 exec, -1\ns_cbranch_vccz L_marked")
    poll(8, 16, S_WS, 7)
    a("L_marked:")
    a("s_barrier")
    stamp(12)
    a(f"s_waitcnt vmcnt({0 if cfg.ackwait else 2})")
    stamp(13)
    a(f"s_mov_b32 s{S_SPIN}, {cfg.spin}")
    for g in range(4):
        ofrag_loads(OFA, g, g + 1)
        for j in range(4*g, 4*g+4):
            for cb in range(2):
                a(f"ds_read_b64_tr_b16 {vr(WF+8*j+4*cb,2)}, v{20+cb} offset:{j*2048}")
                a(f"ds_read_b64_tr_b16 {vr(WF+8*j+4*cb+2,2)}, v{20+cb} offset:{j*2048 + 1024}")
    a("s_waitcnt lgkmcnt(0)")
    def ocheck(g):
        r = OFA[4*g]
        a(f"v_max3_u32 v9, v{r}, v{r+1}, v{r+2}")
        for i in range(3, 15, 2): a(f"v_max3_u32 v9, v9, v{r+i}, v{r+i+1}")
        a(f"v_max_u32 v9, v9, v{r+15}\nv_cmp_eq_u32 vcc, -1, v9")
    for g in range(4):
        a(f"s_waitcnt vmcnt({12-4*g})")
        ocheck(g)
        a(f"s_cbranch_vccnz L_retry{g}\nL_ok{g}:")
        if cfg.tailst == 1: stamp(1 + g)
        if cfg.tailst == 1 and g == 3: a(f"s_sub_u32 s{S_STAMP+5}, {cfg.spin}, s{S_SPIN}\ns_add_u32 s{S_STAMP+5}, s{S_STAMP+5}, s94")
        for j in range(4*g, 4*g+4):
            a(mfma(AS, WF+8*j+4, OFA[j], AS if j else None))
            a(mfma(AK, WF+8*j, OFA[j], AK if j else None))
    oproj_finish(10, 11)
    stamp(14)
    a("s_branch L_end")

    for g in range(4):
        a(f"L_retry{g}:\ns_cmp_eq_u32 s{S_SPIN}, 0\ns_cbranch_scc1 L_ok{g}\ns_sub_u32 s{S_SPIN}, s{S_SPIN}, 1")
        ofrag_loads(OFA, g, g + 1)
        a("s_waitcnt vmcnt(0)")
        ocheck(g)
        a(f"s_cbranch_vccnz L_retry{g}")
        ofrag_loads(OFA, g + 1, 4)
        a(f"s_branch L_ok{g}")
    a("L_oprojB:")
    oproj_addr(L_WOB)
    a(f"""
v_lshlrev_b32 v22, 12, v22
v_lshl_add_u32 v22, v15, 5, v22
s_lshl_b32 s{S_T0}, s{S_T0}, 11
s_add_u32 s{S_T3}, s{S_T3}, s{S_T0}
s_add_u32 s{S_T3}, s{S_T3}, 1024
s_xor_b32 s{S_T0}, s{S_WAVE}, 6
s_mul_i32 s{S_T0}, s{S_T0}, 4608
s_add_u32 s{S_T0}, s{S_T0}, {L_CB}
v_add_u32 v10, s{S_T0}, v12
""")
    def brd(j):
        b = 128 + 8 * (j % 4)
        for cb in range(2):
            a(f"ds_read_b64_tr_b16 {vr(b+4*cb,2)}, v{20+cb} offset:{j*2048}")
            a(f"ds_read_b64_tr_b16 {vr(b+4*cb+2,2)}, v{20+cb} offset:{j*2048 + 1024}")
    for j in range(3): brd(j)
    for j in range(16):
        b = 128 + 8 * (j % 4)
        a(f"s_waitcnt lgkmcnt({4*min(2, 15-j)})")
        a(mfma(AS, b+4, OFB[j], AS if j else None))
        if j + 3 < 16: brd(j + 3)
        a(mfma(AK, b, OFB[j], AK if j else None))
    stamp(11)
    oproj_finish(11, 10)
    stamp(14)
    a("s_barrier      ; pairs with the A exchange barrier")
    a("L_end:")
    if cfg.probe >= -1:
        if cfg.probe == 15: a("s_waitcnt vmcnt(0)"); stamp(15)
        if cfg.probe == -1: a("s_mov_b32 s4, s92")
        a(f"s_cmp_{'lt' if cfg.probe_hi else 'ge'}_u32 s{S_WAVE}, 4\ns_cbranch_scc1 L_exit")
        a("s_add_u32 s4, s4, 6000\ns_mov_b32 s5, 200000\nL_pad:\ns_memrealtime s[90:91]\ns_waitcnt lgkmcnt(0)\ns_sub_u32 s6, s90, s4\ns_cmp_ge_i32 s6, 0\ns_cbranch_scc1 L_exit\ns_sub_u32 s5, s5, 1\ns_cmp_lg_u32 s5, 0\ns_cbranch_scc1 L_pad")
    if cfg.stamps:
        a(f"s_waitcnt vmcnt(0)\ns_memtime s[90:91]\ns_memrealtime s[96:97]\ns_waitcnt lgkmcnt(0)\ns_mov_b32 s{S_STAMP+15}, s90")
        a(f"s_mov_b32 s{S_STAMP+16}, s94\ns_mov_b32 s{S_STAMP+17}, s92\ns_mov_b32 s{S_STAMP+18}, s96\ns_getreg_b32 s{S_STAMP+19}, hwreg(HW_REG_XCC_ID)")
        a(f"s_lshl_b32 s{S_T0}, s2, 3\ns_add_u32 s{S_T0}, s{S_T0}, s{S_WAVE}\ns_lshl_b32 s{S_T0}, s{S_T0}, 7\ns_add_u32 s{S_T0}, s{S_T0}, {WS_ST}")
        a("v_mov_b32 v8, 0\ns_mov_b64 exec, 1")
        for i in range(5):
            for k in range(4): a(f"v_mov_b32 v{12+k}, s{S_STAMP+4*i+k}")
            a(f"buffer_store_dwordx4 v[12:15], v8, {sr(S_WS)}, s{S_T0} offen offset:{16*i}\ns_nop 1")
    a("L_exit:\ns_endpgm")

    a(f"""
L_fallback:
s_mov_b32 s{S_PASS}, 1
s_mov_b32 s{S_OFF}, 0
v_mov_b32 v{AM}, 0xff800000
v_mov_b32 v{AM+1}, 0xff800000
L_fb_loop:
buffer_load_dwordx4 {vr(RING,4)}, v3, {sr(S_WS)}, s{S_OFF} offen sc1
s_waitcnt vmcnt(0)
{mfma(S[0], RING, AQ[0], None)}
{mfma(S[1], RING, AQ[1], None)}
s_nop 15
""")
    for q in range(2):
        for i in range(0, 16, 2): a(f"v_max3_f32 v{AM+q}, v{AM+q}, v{S[q]+i}, v{S[q]+i+1}")
    a(f"""
s_add_u32 s{S_OFF}, s{S_OFF}, 2048
s_cmp_lt_u32 s{S_OFF}, 65536
s_cbranch_scc1 L_fb_loop
v_mov_b32 v7, v{AM}
v_mov_b32 v8, v{AM+1}
s_nop 1
v_permlane32_swap_b32 v{AM}, v7
v_permlane32_swap_b32 v{AM+1}, v8
s_nop 1
v_max_f32 v{AM}, v{AM}, v7
v_max_f32 v{AM+1}, v{AM+1}, v8
s_lshl_b32 s{S_T0}, s{S_WAVE}, 9
s_add_u32 s{S_T0}, s{S_T0}, {L_FB + 256}
v_lshlrev_b32 v11, 2, v1
v_add_u32 v11, s{S_T0}, v11
s_xor_b32 s{S_T0}, s{S_WAVE}, 4
s_lshl_b32 s{S_T0}, s{S_T0}, 9
s_add_u32 s{S_T0}, s{S_T0}, {L_FB + 256}
v_lshlrev_b32 v13, 2, v1
v_add_u32 v13, s{S_T0}, v13
ds_write_b32 v11, v{AM}
ds_write_b32 v11, v{AM+1} offset:256
s_waitcnt lgkmcnt(0)
s_barrier
ds_read_b32 v7, v13
ds_read_b32 v8, v13 offset:256
s_waitcnt lgkmcnt(0)
v_max_f32 v{AM}, v{AM}, v7
v_max_f32 v{AM+1}, v{AM+1}, v8
v_sub_f32 v{AM}, 0, v{AM}
v_sub_f32 v{AM+1}, 0, v{AM+1}
s_branch L_attn_start
L_code_end:
""")
    head = open("cdna_kernels/" + NAME + ".s.ref").read().split("\n")
    top = [l for l in head if l.startswith(";") and "@launch" not in l and not l.startswith("; Override") and not l.startswith("; grid=")]
    out = "\n".join(top) + f"""
; @launch grid=(256,1,1) block=(512,1,1) lds={LDS_BYTES}
.amdgcn_target "amdgcn-amd-amdhsa--gfx950"
.text
.globl {NAME}_kernel
.p2align 8
.type {NAME}_kernel,@function
{NAME}_kernel:
""" + a.text() + f""".section .rodata,"a"
.p2align 6
.amdhsa_kernel {NAME}_kernel
  .amdhsa_next_free_vgpr 256
  .amdhsa_next_free_sgpr 102
  .amdhsa_accum_offset 256
  .amdhsa_group_segment_fixed_size 0
  .amdhsa_kernarg_size 72
  .amdhsa_user_sgpr_count 2
  .amdhsa_user_sgpr_kernarg_segment_ptr 1
  .amdhsa_system_sgpr_workgroup_id_x 1
.end_amdhsa_kernel
"""
    return out

if __name__ == "__main__":
    cfg = Cfg()
    outp = "cdna_kernels/" + NAME + ".s"
    for arg in sys.argv[1:]:
        if arg.startswith("-o"): outp = arg[2:]
        else:
            k, v = arg.split("="); setattr(cfg, k, type(getattr(Cfg, k))(int(v)))
    open(outp, "w").write(gen(cfg))
    import subprocess
    r = subprocess.run(["clang", "-x", "assembler", "-target", "amdgcn-amd-amdhsa", "-mcpu=gfx950", "-c", outp, "-o", "gen_chk.o"], capture_output=True, text=True)
    if r.returncode: print(r.stderr); sys.exit(1)
    print("wrote", outp)
```

```python
import sys, math, struct, re

NAME = "concat_heads__softmax_full_mha__sliding_local_dilated__prompt"

class Cfg:
    prio_iter = 6
    spin = 400000
    depth = 5
    rot = 7
    rotb = 7
    pre = 0
    bdepth = 2
    pubg = 15
    gprio = 0
    la = 6
    lab = 4
    vprio = 3
    oprio = 0
    wodepth = 2
    cpf = 1
    ackwait = 1
    force_fallback = False
    stamps = False
    probe = -2
    rt = 0
    tailst = 0

def f32(x): return "0x%08x" % struct.unpack("<I", struct.pack("<f", x))[0]

WS_KV = 0
WS_OA = 4 << 20
WS_OB = 6 << 20
WS_FL = 8 << 20
FL_KV = WS_FL
WS_ST = WS_FL + 768 * 128
WS_SIZE = WS_ST + 256 * 16 * 128

L_H = 4 * 8192
L_W = 6 * 8192
L_QX = 147456
L_MX = 155648
L_SY = L_MX + 2048
L_HX = L_SY + 64
L_WOB = 0
L_WOA = 65536
L_CB = 131072
L_FX = L_CB + 18432
LDS_BYTES = 163840
G_BDONE, G_MARK, G_WO, G_BRD, G_BX = 16, 17, 18, 19, 20

S_XA, S_WA, S_WOA, S_XB, S_WB, S_WOB, S_OUT, S_DBG, S_WS = 24, 28, 32, 36, 40, 44, 48, 52, 56
S_WAVE, S_RB, S_HG, S_OBO, S_OAO, S_RBO, S_NB = 60, 61, 62, 63, 64, 65, 66
S_T0, S_T1, S_T2, S_T3 = 67, 68, 69, 70
S_LB, S_ROT, S_KX, S_KW = 71, 72, 73, 74
S_G = [76, 77, 78, 79]
S_MASK = 80
S_OFF, S_IT, S_PP, S_PIT, S_FL, S_PASS, S_SPIN, S_C = 82, 83, 84, 85, 86, 87, 88, 89
S_HM = 75
S_STAMP = 4

class Asm:
    def __init__(self): self.L = []; self.nlab = 0
    def __call__(self, s):
        for line in s.strip("\n").split("\n"):
            line = line.strip()
            if not line: continue
            if line.endswith(":") or line.startswith(";") or line.startswith("."): self.L.append(line)
            else: self.L.append("    " + line)
    def lab(self, p="L"):
        self.nlab += 1; return f"{p}_{self.nlab}"
    def text(self): return "\n".join(self.L) + "\n"

def vr(a, n): return f"v[{a}:{a+n-1}]"
def sr(a, n=4): return f"s[{a}:{a+n-1}]"
def mfma(d, a_, b_, c): return f"v_mfma_f32_32x32x16_bf16 {vr(d,16)}, {vr(a_,4)}, {vr(b_,4)}, {vr(c,16) if c is not None else 0}"

def gen(cfg):
    a = Asm()
    def stamp(i):
        if cfg.tailst == 2: return
        if cfg.probe == i:
            a(f"s_memrealtime s[90:91]\ns_waitcnt lgkmcnt(0)\ns_mov_b32 s4, s90")
        if cfg.stamps:
            a(f"{'s_memrealtime' if cfg.rt else 's_memtime'} s[90:91]\ns_waitcnt lgkmcnt(0)\ns_mov_b32 s{S_STAMP+i}, s90")
    def set_exec(nlanes):
        if nlanes < 32: a(f"s_mov_b64 exec, {hex((1 << nlanes) - 1)}")
        elif nlanes == 32: a("s_mov_b32 exec_hi, 0")
    def poll(voff, nlanes, srdi, tmp, preloaded=False):
        lp, dn, ck = a.lab("L_poll"), a.lab("L_pdone"), a.lab("L_pchk")
        set_exec(nlanes)
        a(f"s_mov_b32 s{S_SPIN}, {cfg.spin}")
        if preloaded: a(f"s_branch {ck}")
        a(f"{lp}:")
        a(f"buffer_load_dword v{tmp}, v{voff}, {sr(srdi)}, 0 offen sc1")
        a(f"{ck}:")
        a(f"s_waitcnt vmcnt(0)")
        a(f"v_cmp_ne_u32 vcc, 1, v{tmp}")
        a(f"s_cbranch_vccz {dn}")
        a(f"s_sub_u32 s{S_SPIN}, s{S_SPIN}, 1\ns_cmp_lg_u32 s{S_SPIN}, 0\ns_cbranch_scc1 {lp}")
        a(f"{dn}:")
        a("s_mov_b64 exec, -1")
    def lds_wait(vaddr, tmp, val, off=0, preloaded=False):
        l0, l1 = a.lab(), a.lab()
        if preloaded: a(f"v_cmp_gt_u32 vcc, {val}, v{tmp}\ns_cbranch_vccz {l1}")
        a(f"""
s_mov_b32 s{S_SPIN}, {cfg.spin}
{l0}:
ds_read_b32 v{tmp}, v{vaddr} offset:{off}
s_waitcnt lgkmcnt(0)
v_cmp_gt_u32 vcc, {val}, v{tmp}
s_cbranch_vccz {l1}
s_sub_u32 s{S_SPIN}, s{S_SPIN}, 1
s_cmp_lg_u32 s{S_SPIN}, 0
s_cbranch_scc1 {l0}
{l1}:
""")

    stages = []
    for s in range(8): stages.append(dict(n=f"KV{s}", p=[("x", "A", s), ("w", "A", 1, s), ("w", "A", 2, s)]))
    for s in range(4): stages.append(dict(n=f"Q{s}", p=[("w", "A", 0, 2*s), ("w", "A", 0, 2*s+1)]))
    stage_of = {p: si for si, st in enumerate(stages) for p in st["p"]}
    seq = [p for st in stages for p in st["p"]]
    pre = [("w", "B", ty, 0) for ty in range(cfg.pre)]
    assert not pre or cfg.rot == cfg.rotb
    for p in pre: seq.append(p); stage_of[p] = 12
    D = cfg.depth
    land = {si: max(seq.index(p) for p in st["p"]) for si, st in enumerate(stages)}
    slot = {("x", "A", s): s for s in range(8)}; busy = {k: None for k in range(8, 18)}
    prog = []; nxt = [0]; passed = [-1]
    def try_issue(lim):
        while nxt[0] < min(lim, len(seq)):
            p = seq[nxt[0]]
            if p[0] == "w":
                ok = [k for k in busy if busy[k] is None or passed[0] >= busy[k] + 2]
                if not ok: return
                k = min(ok, key=lambda k: (-1 if busy[k] is None else busy[k]))
                busy[k] = stage_of[p]; slot[p] = k
            prog.append(("issue", p)); nxt[0] += 1
    try_issue(D); prog.append(("start",))
    for j in range(len(seq) - len(pre)):
        assert nxt[0] > j
        prog.append(("wait", j, nxt[0]))
        try_issue(j + 1 + D)
        for si in [si for si in land if land[si] == j]:
            prog.append(("bar", si)); passed[0] = si
            try_issue(j + 1 + D)
    assert nxt[0] == len(seq)
    grp = [[8, 10, 12], [9, 11, 13], [6, 14, 16], [7, 15, 17]]
    src = [slot[p] for p in pre]; src += [k for k in range(8, 18) if k not in src]
    dst = grp[0][:len(pre)]; dst += [k for k in range(8, 18) if k not in dst]
    ren = dict(zip(src, dst))
    for p in slot:
        if p[0] == "w": slot[p] = ren[slot[p]]
    bst = [[("x", "B", s), ("w", "B", 0, s), ("w", "B", 1, s), ("w", "B", 2, s)] for s in range(8)]
    for s in range(8):
        slot[("x", "B", s)] = s % 4
        for ty in range(3): slot[("w", "B", ty, s)] = grp[s % 4][ty]

    kstate = {"k": None}
    def set_k(k):
        if kstate["k"] == k: return False
        if k: a(f"s_add_u32 s{S_KX}, s{S_ROT}, {k*128}\ns_and_b32 s{S_KX}, s{S_KX}, 1023")
        else: a(f"s_mov_b32 s{S_KX}, s{S_ROT}")
        a(f"s_mul_i32 s{S_KW}, s{S_KX}, 1536")
        kstate["k"] = k; return True
    def issue(p, vx, vw):
        if p[0] == "x":
            _, br, k = p
            a(f"s_add_u32 m0, s{S_LB}, {slot[p]*8192}")
            if not set_k(k): a("s_nop 0")
            srdi = S_XA if br == "A" else S_XB
            a(f"buffer_load_dwordx4 v{vx}, {sr(srdi)}, s{S_KX} offen lds")
            a(f"buffer_load_dwordx4 v{vx+1}, {sr(srdi)}, s{S_KX} offen offset:1024 lds")
        else:
            _, br, ty, k = p
            set_k(k)
            a(f"s_add_u32 m0, s{S_LB}, {slot[p]*8192}")
            a(f"s_add_u32 s{S_T0}, s{S_KW}, {ty*1024}")
            srdi = S_WA if br == "A" else S_WB
            a(f"buffer_load_dwordx4 v{vw}, {sr(srdi)}, s{S_T0} offen lds")
            a(f"buffer_load_dwordx4 v{vw+1}, {sr(srdi)}, s{S_T0} offen offset:1024 lds")
    def dma_offsets(br, vx, vw, t):
        a(f"""
s_and_b32 s{S_T0}, s{S_WAVE}, 3
s_lshl_b32 s{S_LB}, s{S_T0}, 11
s_lshl_b32 s{S_T1}, s{S_T0}, 4
v_lshrrev_b32 v{t}, 3, v1
v_add_u32 v{t+1}, s{S_T1}, v{t}
v_and_b32 v{t+2}, 7, v1
v_lshrrev_b32 v{t+3}, 4, v1
v_xor_b32 v{t+4}, v{t+2}, v{t+3}
v_lshlrev_b32 v{t+4}, 4, v{t+4}
v_and_b32 v{t+3}, 1, v{t+3}
v_lshlrev_b32 v{t+3}, 2, v{t+3}
v_xor_b32 v{t+3}, v{t+2}, v{t+3}
v_lshlrev_b32 v{t+3}, 4, v{t+3}          ; W chunk
v_mul_u32_u24 v{vw}, 3072, v{t+1}
s_lshl_b32 s{S_T1}, s{S_HG}, 7
v_add3_u32 v{vw}, v{vw}, v{t+3}, s{S_T1}
v_add_u32 v{vw+1}, {8*3072-1024}, v{vw}
s_lshl_b32 s{S_T0}, s{S_RB}, 16
""")
        if br == "B":
            a(f"""
v_and_b32 v{t+2}, 31, v{t+1}
v_lshrrev_b32 v{t+1}, 5, v{t+1}
v_lshl_add_u32 v{t+1}, v{t+2}, 1, v{t+1}
""")
        a(f"""
v_lshl_add_u32 v{vx}, v{t+1}, 10, v{t+4}
v_add_u32 v{vx}, s{S_T0}, v{vx}
v_xor_b32 v{vx+1}, 64, v{vx}
v_add_u32 v{vx+1}, {(8 if br == 'A' else 16)*1024-1024}, v{vx+1}
s_lshl_b32 s{S_ROT}, s{S_HG}, 1
s_add_u32 s{S_ROT}, s{S_ROT}, s{S_RB}
s_lshr_b32 s{S_T1}, s{S_HG}, 2
s_add_u32 s{S_ROT}, s{S_ROT}, s{S_T1}
s_and_b32 s{S_ROT}, s{S_ROT}, {cfg.rot if br == 'A' else cfg.rotb}
s_lshl_b32 s{S_ROT}, s{S_ROT}, 7
""")

    ptr = [(S_XA, 0, 2 << 20), (S_WA, 8, 3 << 19), (S_WOA, 16, 1 << 19), (S_XB, 24, 2 << 20), (S_WB, 32, 3 << 19),
           (S_WOB, 40, 1 << 19), (S_OUT, 48, 4 << 20), (S_DBG, 56, 256), (S_WS, 64, WS_SIZE)]
    def ptr_loads(lst):
        for d, off, n in ptr:
            if d in lst: a(f"s_load_dwordx2 {sr(d,2)}, s[0:1], {off}")
    def srd_words(lst):
        for d, off, n in ptr:
            if d in lst: a(f"s_mov_b32 s{d+2}, {hex(n)}\ns_mov_b32 s{d+3}, 0x00020000")
    def oa_slot():
        a(f"""
s_lshl_b32 s{S_OAO}, s{S_RB}, 6
s_lshl_b32 s{S_T1}, s{S_HG}, 2
s_add_u32 s{S_OAO}, s{S_OAO}, s{S_T1}
s_and_b32 s{S_T1}, s{S_WAVE}, 3
s_add_u32 s{S_OAO}, s{S_OAO}, s{S_T1}
s_lshl_b32 s{S_OAO}, s{S_OAO}, 10
s_add_u32 s{S_OAO}, s{S_OAO}, {WS_OA}
""")
    a("; generated by gen/gen.py\ns_cmp_ge_u32 s2, 256\ns_cbranch_scc1 L_exit")
    if cfg.stamps: a("s_memrealtime s[92:93]\ns_memtime s[94:95]")
    elif cfg.probe >= -1: a("s_memrealtime s[92:93]")
    ptr_loads([S_XA, S_WA])
    a(f"""
v_lshrrev_b32 v2, 6, v0
v_and_b32 v1, 63, v0
v_readfirstlane_b32 s{S_WAVE}, v2
s_and_b32 s{S_HG}, s2, 1
s_lshl_b32 s{S_HG}, s{S_HG}, 2
s_bfe_u32 s{S_T2}, s2, 0x20003
s_or_b32 s{S_HG}, s{S_HG}, s{S_T2}
s_and_b32 s{S_RB}, s2, 6
s_lshl_b32 s{S_RB}, s{S_RB}, 2
s_lshr_b32 s{S_T2}, s2, 5
s_or_b32 s{S_RB}, s{S_RB}, s{S_T2}
s_bitcmp1_b32 s{S_WAVE}, 2
s_cbranch_scc1 L_loader
""")
    if cfg.cpf:
        a(f"""
s_cmp_lg_u32 s{S_WAVE}, 8
s_cbranch_scc1 L_nopf
s_getpc_b64 s[96:97]
L_pc:
s_lshr_b32 s{S_T1}, s2, 3
s_lshl_b32 s{S_T1}, s{S_T1}, 10
v_lshl_add_u32 v2, v1, 4, s{S_T1}
v_min_u32 v2, L_code_end - L_pc - 16, v2
v_mov_b32 v3, s97
v_add_co_u32 v2, vcc, s96, v2
s_nop 1
v_addc_co_u32 v3, vcc, 0, v3, vcc
global_load_dwordx4 v[164:167], v[2:3], off
L_nopf:
""")
    a(f"s_cmp_lt_u32 s{S_WAVE}, 4\ns_cbranch_scc1 L_gemm\ns_branch L_spare")

    AQ = (8, 12); NM = (16, 32); O = (48, 64); S = (80, 96); RING = 112; AM = 160
    HX, HW = 164, 166
    def kv(t): b = RING + 12 * (t % 4); return b, b + 4, b + 8
    def acc_init():
        for q in range(2):
            for k in range(0, 10, 2): a(f"v_mov_b64 {vr(O[q]+k,2)}, 0")
        for k in range(0, 8, 2): a(f"v_mov_b64 {vr(S[1]+8+k,2)}, 0")
    def a_setup():
        ptr_loads([S_WB, S_DBG, S_WS]); srd_words([S_WB, S_DBG, S_WS])
        oa_slot()
        a(f"""
s_mov_b32 s{S_MASK}, 0xffff
s_mov_b32 s{S_MASK+1}, 0xffff
s_mov_b32 s{S_PASS}, 0
s_lshr_b32 s{S_T2}, s{S_WAVE}, 3
s_lshl_b32 s{S_T0}, s{S_T2}, 15
s_add_u32 s{S_OAO}, s{S_OAO}, s{S_T0}
s_lshl_b32 s{S_T0}, s{S_WAVE}, 2
s_add_u32 s{S_T0}, s{S_T0}, {L_SY}
v_mov_b32 v5, s{S_T0}
v_mov_b32 v6, 0
ds_write_b32 v5, v6
s_lshl_b32 s{S_T0}, s{S_HG}, 1
s_add_u32 s{S_T0}, s{S_T0}, s{S_T2}
s_lshl_b32 s{S_T0}, s{S_T0}, 11
s_and_b32 s{S_T1}, s{S_WAVE}, 2
s_lshl_b32 s{S_T1}, s{S_T1}, 2
s_add_u32 s{S_T0}, s{S_T0}, s{S_T1}
s_add_u32 s{S_T0}, s{S_T0}, {FL_KV}
v_lshrrev_b32 v162, 1, v1
v_lshlrev_b32 v162, 7, v162
v_and_b32 v6, 1, v1
v_lshl_add_u32 v162, v6, 2, v162
v_add_u32 v162, s{S_T0}, v162
s_and_b32 s{S_T0}, s{S_WAVE}, 3
s_lshl_b32 s{S_T1}, s{S_T0}, 1
s_add_u32 s{S_T1}, s{S_T1}, s{S_T2}
s_lshl_b32 s{S_T3}, s{S_T1}, 6
v_add_u32 v16, s{S_T3}, v1
v_lshlrev_b32 v18, 2, v16
v_lshlrev_b32 v16, 4, v16
v_add_u32 v16, {L_QX}, v16
v_add_u32 v18, {L_MX}, v18
v_xor_b32 v17, 1024, v16
v_xor_b32 v19, 256, v18
s_lshl_b32 s{S_T0}, s{S_HG}, 3
s_add_u32 s{S_T0}, s{S_T0}, s{S_T1}
s_lshl_b32 s{S_T0}, s{S_T0}, 16
v_lshlrev_b32 v163, 4, v1
v_add_u32 v3, s{S_T0}, v163
v_and_b32 v4, 15, v1
v_lshlrev_b32 v4, 4, v4
v_lshrrev_b32 v7, 5, v1
v_lshl_add_u32 v4, v7, 8, v4
v_add_u32 v4, s{S_T0}, v4
v_mov_b32 v2, 0xdddd
v_and_b32 v6, 27, v1
v_cmp_eq_u32 vcc, 16, v6
v_mov_b32 v6, 0x3f803f80
s_nop 0
v_cndmask_b32 v6, 0, v6, vcc
v_mov_b32 v7, v6
""")
        for t in range(4):
            for k in range(0, 8, 2): a(f"v_mov_b64 {vr(kv(t)[1]+k,2)}, v[6:7]")
        acc_init()
        a("s_waitcnt lgkmcnt(0)")
    def ld(t):
        k, v0_, v1_ = kv(t); off = (t % 2) * 2048
        L = [f"buffer_load_dwordx4 {vr(k,4)}, v3, {sr(S_WS)}, s{S_OFF} offen offset:{off} sc1",
             f"s_mov_b64 exec, {sr(S_MASK,2)}",
             f"buffer_load_dwordx4 {vr(v0_,4)}, v4, {sr(S_WS)}, s{S_OFF} offen offset:{off+1024} sc1",
             f"buffer_load_dwordx4 {vr(v1_,4)}, v4, {sr(S_WS)}, s{S_OFF} offen offset:{off+1536} sc1",
             "s_mov_b64 exec, -1"]
        if t % 2 == 1: L += [f"s_add_u32 s{S_OFF}, s{S_OFF}, 4096"]
        return L

    a("L_loader:")
    dma_offsets("A", HX, HW, 10)
    srd_words([S_XA, S_WA])
    a("s_waitcnt lgkmcnt(0)")
    for k, op in enumerate(prog):
        if op[0] == "issue": issue(op[1], HX, HW)
        elif op[0] == "start":
            stamp(0)
            a("s_call_b64 s[98:99], L_asetup")
        elif op[0] == "wait":
            if k + 1 < len(prog) and prog[k+1][0] != "wait":
                a(f"s_waitcnt vmcnt({2 * (op[2] - op[1] - 1)})")
        else:
            si = op[1]
            if si in (0, 7, 8, 11): stamp({0: 1, 7: 3, 8: 4, 11: 5}[si])
            a(f"s_barrier   ; stage {stages[si]['n']} landed")
    a(f"s_mov_b32 s{S_PIT}, {cfg.prio_iter}\ns_setprio 2")
    a("L_handover:\ns_barrier")
    stamp(2)
    a(f"""
ds_read_b128 {vr(AQ[0],4)}, v16
ds_read_b128 {vr(AQ[1],4)}, v17
ds_read_b32 v{AM}, v18
ds_read_b32 v{AM+1}, v19
""")
    poll(162, 32, S_WS, 6)
    stamp(7)
    a(f"v_mov_b32 v6, 1\nL_a_start:\ns_mov_b32 s{S_OFF}, 0\ns_mov_b32 s{S_IT}, 0")
    for t in range(3):
        for x in ld(t): a(x)
    a("s_waitcnt lgkmcnt(0)\nds_write_b32 v5, v6")
    for q in range(2):
        a(f"v_mov_b32 v{NM[q]}, v{AM+q}\nv_mov_b32 v{NM[q]+1}, v{AM+q}")
        for k in range(2, 16, 2): a(f"v_mov_b64 {vr(NM[q]+k,2)}, {vr(NM[q],2)}")
    a("s_waitcnt vmcnt(6)")
    a(mfma(S[0], kv(0)[0], AQ[0], NM[0]))
    a("s_nop 11")
    stamp(8)
    a(".p2align 3\nL_loop:")
    for u in range(8):
        t, q = u // 2, u % 2
        c = S[u % 2]; o = S[(u + 1) % 2]
        tp, qp = (u - 1) // 2, (u - 1) % 2
        tn, qn = (u + 1) // 2, (u + 1) % 2
        e = lambda i: a(f"v_exp_f32 v{c+i}, v{c+i}")
        e(0); e(1)
        a(f"v_smfmac_f32_32x32x32_bf16 {vr(O[qp],16)}, {vr(kv(tp)[2],4)}, {vr(o+8,8)}, v2")
        if q == 0:
            for x in ld(t + 3): a(x)
        e(2); e(3)
        if q == 1: a("s_waitcnt vmcnt(6)")
        e(4)
        a(mfma(o, kv(tn)[0], AQ[qn], NM[qn]))
        for i in range(5, 11): e(i)
        a(f"v_smfmac_f32_32x32x32_bf16 {vr(O[q],16)}, {vr(kv(t)[1],4)}, {vr(c,8)}, v2")
        for i in range(11, 16): e(i)
    if cfg.tailst == 4:
        a("s_memtime s[90:91]\n" + "".join(f"s_mov_b32 s{S_STAMP+k}, s{S_STAMP+k+1}\n" for k in range(7)) + f"s_waitcnt lgkmcnt(0)\ns_mov_b32 s{S_STAMP+7}, s90")
    thr = f32(2.0**40) if not cfg.force_fallback else f32(2.0**-3)
    a(f"""
s_add_u32 s{S_IT}, s{S_IT}, 1
s_cmp_lt_u32 s{S_IT}, s{S_PIT}
s_cbranch_scc1 L_loop
s_setprio 0
s_cmp_lt_u32 s{S_IT}, 8
s_cbranch_scc1 L_loop
v_smfmac_f32_32x32x32_bf16 {vr(O[1],16)}, {vr(kv(3)[2],4)}, {vr(S[1]+8,8)}, v2
""")
    stamp(9)
    a(f"""
v_min_u32 v20, 11, v1
v_cmp_gt_u32 vcc, 4, v20
v_lshlrev_b32 v20, 2, v20
v_add_u32 v20, {L_SY}, v20
v_cndmask_b32 v22, 1, {G_MARK}, vcc
ds_read_b32 v21, v20
s_sub_u32 s{S_T0}, s{S_WAVE}, 4
s_mul_i32 s{S_T1}, s{S_T0}, 2304
s_add_u32 s{S_T1}, s{S_T1}, {L_CB}
v_add_u32 v16, s{S_T1}, v163
v_lshl_add_u32 v17, v1, 2, s{S_T1}
s_xor_b32 s{S_T0}, s{S_T0}, 4
s_mul_i32 s{S_T1}, s{S_T0}, 2304
s_add_u32 s{S_T1}, s{S_T1}, {L_CB}
v_add_u32 v18, s{S_T1}, v163
v_lshl_add_u32 v19, v1, 2, s{S_T1}
s_lshl_b32 s{S_T0}, s{S_T0}, 2
s_add_u32 s{S_T0}, s{S_T0}, {L_SY + 16}
v_mov_b32 v23, s{S_T0}
s_mov_b32 s{S_T2}, {thr}
s_waitcnt lgkmcnt(0)
""")
    lds_wait(20, 21, "v22", preloaded=True)
    a(f"""
ds_write_b128 v16, {vr(O[1],4)}
ds_write_b128 v16, {vr(O[1]+4,4)} offset:1024
ds_write_b32 v17, v{O[1]+8} offset:2048
v_max3_f32 v6, |v{O[0]}|, |v{O[0]+1}|, |v{O[0]+2}|
v_max3_f32 v6, v6, |v{O[0]+3}|, |v{O[0]+4}|
v_max3_f32 v6, v6, |v{O[0]+5}|, |v{O[0]+6}|
v_max3_f32 v6, v6, |v{O[0]+7}|, |v{O[1]}|
v_max3_f32 v6, v6, |v{O[1]+1}|, |v{O[1]+2}|
v_max3_f32 v6, v6, |v{O[1]+3}|, |v{O[1]+4}|
v_max3_f32 v6, v6, |v{O[1]+5}|, |v{O[1]+6}|
v_max_f32 v6, v6, |v{O[1]+7}|
v_mul_f32 v6, {f32(2.0**-80)}, v6
v_max3_f32 v6, v6, v{O[0]+8}, v{O[1]+8}
v_cmp_nlt_f32 vcc, v6, s{S_T2}
; state: 2 = partial written, 3 = unsafe, 4 = true max written, 6 = second pass written
s_lshl_b32 s{S_T3}, s{S_PASS}, 2
s_add_u32 s{S_T3}, s{S_T3}, 2
s_cmp_lg_u64 vcc, 0
s_cselect_b32 s{S_T1}, 1, 0
s_andn2_b32 s{S_T1}, s{S_T1}, s{S_PASS}
s_add_u32 s{S_T0}, s{S_T3}, s{S_T1}
v_mov_b32 v6, s{S_T0}
s_waitcnt lgkmcnt(0)
ds_write_b32 v5, v6
s_cmp_lg_u32 s{S_T1}, 0
s_cbranch_scc1 L_fallback
""")
    lds_wait(23, 21, f"s{S_T3}")
    a(f"""
ds_read_b128 {vr(24,4)}, v18
ds_read_b128 {vr(28,4)}, v18 offset:1024
ds_read_b32 v32, v19 offset:2048
v_cmp_ne_u32 vcc, s{S_T3}, v21
s_setprio 3
s_cbranch_vccnz L_fallback
L_final:
s_waitcnt lgkmcnt(0)
""")
    stamp(10)
    a(f"v_add_f32 v32, v32, v{O[0]+8}\nv_rcp_f32 v32, v32")
    for k in range(8): a(f"v_add_f32 v{24+k}, v{24+k}, v{O[0]+k}")
    for k in range(8): a(f"v_mul_f32 v{24+k}, v{24+k}, v32")
    for k in range(4): a(f"v_cvt_pk_bf16_f32 v{36+k}, v{24+2*k}, v{24+2*k+1}")
    for k in range(4): a(f"v_min_u32 v{36+k}, -2, v{36+k}")
    a(f"buffer_store_dwordx4 {vr(36,4)}, v163, {sr(S_WS)}, s{S_OAO} offen sc1")
    stamp(11)
    if cfg.ackwait: a("s_waitcnt vmcnt(0)")
    stamp(12)
    a("s_barrier\ns_branch L_end")

    a(f"""
L_fallback:
s_cmp_lg_u32 s{S_PASS}, 0
s_cbranch_scc1 L_final
s_mov_b32 s{S_PASS}, 1
s_mov_b32 s{S_OFF}, 0
v_mov_b32 v{AM}, 0xff800000
v_mov_b32 v{AM+1}, 0xff800000
L_fb_loop:
buffer_load_dwordx4 {vr(RING,4)}, v3, {sr(S_WS)}, s{S_OFF} offen sc1
s_waitcnt vmcnt(0)
{mfma(S[0], RING, AQ[0], None)}
{mfma(S[1], RING, AQ[1], None)}
s_nop 15
""")
    for q in range(2):
        for i in range(0, 16, 2): a(f"v_max3_f32 v{AM+q}, v{AM+q}, v{S[q]+i}, v{S[q]+i+1}")
    a(f"""
s_add_u32 s{S_OFF}, s{S_OFF}, 2048
s_cmp_lt_u32 s{S_OFF}, 65536
s_cbranch_scc1 L_fb_loop
v_mov_b32 v6, v{AM}
v_mov_b32 v7, v{AM+1}
s_nop 1
v_permlane32_swap_b32 v{AM}, v6
v_permlane32_swap_b32 v{AM+1}, v7
s_nop 1
v_max_f32 v{AM}, v{AM}, v6
v_max_f32 v{AM+1}, v{AM+1}, v7
s_sub_u32 s{S_T0}, s{S_WAVE}, 4
s_lshl_b32 s{S_T1}, s{S_T0}, 9
s_add_u32 s{S_T1}, s{S_T1}, {L_FX}
v_lshl_add_u32 v16, v1, 2, s{S_T1}
s_xor_b32 s{S_T0}, s{S_T0}, 4
s_lshl_b32 s{S_T1}, s{S_T0}, 9
s_add_u32 s{S_T1}, s{S_T1}, {L_FX}
v_lshl_add_u32 v17, v1, 2, s{S_T1}
ds_write_b32 v16, v{AM}
ds_write_b32 v16, v{AM+1} offset:256
v_mov_b32 v6, 4
s_waitcnt lgkmcnt(0)
ds_write_b32 v5, v6
""")
    lds_wait(23, 21, 4)
    a(f"""
ds_read_b32 v20, v17 offset:256
ds_read_b32 v21, v17
s_waitcnt lgkmcnt(0)
v_max_f32 v{AM}, v{AM}, v20
v_max_f32 v{AM+1}, v{AM+1}, v21
v_sub_f32 v{AM}, 0, v{AM}
v_sub_f32 v{AM+1}, 0, v{AM+1}
""")
    acc_init()
    a("s_branch L_a_start")

    a("L_asetup:")
    a_setup()
    a("s_setpc_b64 s[98:99]")
    lskip = a.lab()
    a(f"""
L_spare:
s_call_b64 s[98:99], L_asetup
s_sub_u32 s{S_T0}, s{S_WAVE}, 8
s_lshl_b32 s{S_T0}, s{S_T0}, 4
s_or_b32 s{S_T0}, s{S_T0}, s2
s_cmp_ge_u32 s{S_T0}, 8
s_cbranch_scc1 {lskip}
v_lshrrev_b32 v20, 1, v1
v_lshlrev_b32 v20, 7, v20
v_and_b32 v21, 1, v1
v_lshl_add_u32 v20, v21, 4, v20
s_lshl_b32 s{S_T1}, s2, 12
s_add_u32 s{S_T1}, s{S_T1}, {WS_FL}
s_lshl_b32 s{S_T0}, s2, 2
buffer_store_dwordx4 {vr(O[0],4)}, v20, {sr(S_WS)}, s{S_T1} offen sc1
v_mov_b32 v21, 1
s_waitcnt vmcnt(0)
s_mov_b64 exec, 1
buffer_store_dword v21, v163, {sr(S_DBG)}, s{S_T0} offen sc1
s_mov_b64 exec, -1
{lskip}:
s_mov_b32 s{S_PIT}, 8
s_setprio 1
""")
    for st_ in stages: a("s_barrier")
    a("s_branch L_handover")

    LX, LW, LH = 152, 154, 156
    VS, VV, VA, VC = 158, 159, 160, 161
    NEGM, QXA, WO = 162, 164, 166
    a("L_gemm:\ns_setprio 2")
    rest = [S_WOA, S_XB, S_WB, S_WOB, S_OUT, S_DBG, S_WS]
    ptr_loads(rest); srd_words(rest)
    oa_slot()
    dma_offsets("B", LX, LW, 16)
    a(f"""
s_sub_u32 s{S_T0}, s{S_T0}, 16384
s_cmp_eq_u32 s{S_RB}, 0
s_cselect_b32 s{S_T0}, 0x80000000, s{S_T0}
s_cselect_b32 s{S_HM}, 15, 0
v_lshl_add_u32 v{LH}, v16, 11, v20
v_add_u32 v{LH}, s{S_T0}, v{LH}
v_xor_b32 v{LH+1}, 64, v{LH}
s_and_b32 s{S_T0}, s2, 7
s_lshl_b32 s{S_RBO}, s{S_T0}, 2
s_lshr_b32 s{S_T2}, s2, 6
s_or_b32 s{S_RBO}, s{S_RBO}, s{S_T2}
s_bfe_u32 s{S_NB}, s2, 0x30003
s_lshl_b32 s{S_T0}, s{S_NB}, 7
v_lshl_add_u32 v{WO}, v16, 10, v19
v_add_u32 v{WO}, s{S_T0}, v{WO}
v_add_u32 v{WO+1}, 7168, v{WO}
s_lshl_b32 s{S_PIT}, s{S_RBO}, 1
s_add_u32 s{S_PIT}, s{S_PIT}, s{S_NB}
s_and_b32 s{S_PIT}, s{S_PIT}, 7
s_lshl_b32 s{S_PP}, s{S_PIT}, 16
s_lshl_b32 s{S_T0}, s{S_LB}, 3
s_add_u32 s{S_PP}, s{S_PP}, s{S_T0}
s_mov_b32 s{S_C}, {f32(0.25 * math.log2(math.e))}
s_lshl_b32 s{S_T0}, s{S_WAVE}, 2
s_add_u32 s{S_T0}, s{S_T0}, {L_SY}
v_mov_b32 v{VS}, s{S_T0}
s_and_b32 s{S_T0}, s{S_WAVE}, 1
s_lshr_b32 s{S_T1}, s{S_WAVE}, 1
v_and_b32 v14, 31, v1
v_lshrrev_b32 v15, 5, v1             ; h
v_bfe_u32 v16, v1, 1, 3
v_xor_b32 v16, v16, v15
v_lshlrev_b32 v16, 4, v16
v_lshl_add_u32 v2, v14, 7, v16
s_lshl_b32 s{S_T2}, s{S_T0}, 12
v_add_u32 v2, s{S_T2}, v2
v_xor_b32 v3, 32, v2
v_xor_b32 v4, 64, v2
v_xor_b32 v5, 96, v2
v_and_b32 v6, 0x7ff, v2
v_xor_b32 v7, 32, v6
v_xor_b32 v8, 64, v6
v_xor_b32 v9, 96, v6
v_bfe_u32 v16, v1, 2, 2              ; r4
v_lshl_add_u32 v17, v15, 3, v16      ; 8h + r4
v_and_b32 v18, 3, v1
v_lshlrev_b32 v{VA}, 2, v18
v_add_u32 v{VA}, {L_SY}, v{VA}
v_lshlrev_b32 v18, 3, v18            ; 8*c4
v_bfe_u32 v19, v1, 4, 1
v_lshl_add_u32 v18, v19, 5, v18      ; + 32*nsub
v_bfe_u32 v19, v1, 3, 1              ; (r4>>1)&1
v_xor_b32 v19, s{S_T1}, v19
v_lshl_add_u32 v18, v19, 6, v18
v_lshl_add_u32 v10, v17, 7, v18
v_add_u32 v10, {L_W}, v10
v_add_u32 v11, 0x10000, v10
s_lshl_b32 s{S_T2}, s{S_T1}, 2
s_add_u32 s{S_T2}, s{S_T2}, s{S_T0}
s_lshl_b32 s{S_T2}, s{S_T2}, 6
v_add_u32 v{QXA}, s{S_T2}, v1
v_lshlrev_b32 v{QXA+1}, 2, v{QXA}
v_lshlrev_b32 v{QXA}, 4, v{QXA}
v_add_u32 v{QXA}, {L_QX}, v{QXA}
v_add_u32 v{QXA+1}, {L_MX}, v{QXA+1}
s_lshl_b32 s{S_T2}, s{S_HG}, 1
s_add_u32 s{S_T2}, s{S_T2}, s{S_T1}
s_lshl_b32 s{S_OBO}, s{S_T2}, 11
s_lshl_b32 s{S_T2}, s{S_T2}, 18
s_lshl_b32 s{S_T3}, s{S_RB}, 1
s_add_u32 s{S_T3}, s{S_T3}, s{S_T0}
s_lshl_b32 s{S_T3}, s{S_T3}, 11
s_add_u32 s{S_T2}, s{S_T2}, s{S_T3}
s_lshl_b32 s{S_T3}, s{S_T3}, 4
s_add_u32 s{S_OBO}, s{S_OBO}, s{S_T3}
s_add_u32 s{S_OBO}, s{S_OBO}, {WS_OB}
s_lshl_b32 s{S_FL}, s{S_HG}, 5
s_add_u32 s{S_FL}, s{S_FL}, s{S_RB}
s_lshl_b32 s{S_FL}, s{S_FL}, 5
s_add_u32 s{S_FL}, s{S_FL}, s{S_WAVE}
s_lshl_b32 s{S_FL}, s{S_FL}, 2
s_add_u32 s{S_FL}, s{S_FL}, {FL_KV}
v_and_b32 v16, 0x33, v1
v_bfe_u32 v17, v1, 2, 1
v_lshl_or_b32 v16, v17, 3, v16
v_bfe_u32 v17, v1, 3, 1
v_lshl_or_b32 v16, v17, 2, v16
v_lshlrev_b32 v12, 4, v16
v_add_u32 v12, s{S_T2}, v12
v_and_b32 v16, 15, v1
v_lshlrev_b32 v16, 4, v16
v_lshl_add_u32 v16, v15, 8, v16
v_bfe_u32 v17, v1, 4, 1
v_lshl_add_u32 v13, v17, 17, v16
v_add_u32 v13, s{S_T2}, v13
v_lshlrev_b32 v0, 2, v1
v_mov_b32 v16, 0
ds_write_b32 v{VS}, v16
s_waitcnt lgkmcnt(0)
""")
    stamp(0)
    def wread(dst, p, ks):
        sl = slot[p] - 6; base = 10 if sl < 8 else 11; off = (sl % 8) * 8192 + ks * 2048
        return [(f"ds_read_b64_tr_b16 {vr(dst,2)}, v{base} offset:{off}", dst), (f"ds_read_b64_tr_b16 {vr(dst+2,2)}, v{base} offset:{off+512}", dst+2)]
    def xread(dst, p, ks): return [(f"ds_read_b128 {vr(dst,4)}, v{2+ks} offset:{slot[p]*8192}", dst)]
    ACK, ACV, ACQ = 16, 32, 48
    BQ, BK, BV, BH = 16, 32, 48, 64
    KBF, VBF, QBF = 120, 128, 128
    MP, MD, MA = 120, 124, 140
    M = []; R = []
    def addm(d, x, y, first, tag): M.append(dict(txt=mfma(d, x, y, None if first else d), src=(x, y), tag=tag))
    def addr(lst, st, floor=-1):
        for txt, dst in lst:
            prev = [i for i, m in enumerate(M) if any(s <= dst < s + 4 for s in m["src"])]
            R.append(dict(txt=txt, stage=st, need=len(M), after=max(prev + [floor])))
    for g in range(32):
        s, ks = g // 4, g % 4; b = 64 + 12 * (g % 4)
        addr(xread(b, ("x", "A", s), ks) + wread(b + 4, ("w", "A", 1, s), ks), s)
        addm(ACK, b + 4, b, g == 0, ("K", g))
        addr(wread(b + 8, ("w", "A", 2, s), ks), s)
        addm(ACV, b, b + 8, g == 0, ("V", g))
    fl = len(M) - 1
    for g in range(32):
        s, ks = g // 4, g % 4; b = 64 + 8 * (g % 7)
        addr(xread(b, ("x", "A", s), ks) + wread(b + 4, ("w", "A", 0, s), ks), 8 + s // 2, fl)
        addm(ACQ, b + 4, b, g == 0, ("Q", g))
    fl = len(M) - 1
    for g in range(32):
        s, ks = g // 4, g % 4; b = 80 + 20 * (g % 2); st = 12 + s
        x, xh, wq, wk, wv = b, b+4, b+8, b+12, b+16
        addr(xread(x, ("x", "B", s), ks) + wread(wq, ("w", "B", 0, s), ks), st, fl)
        addm(BQ, wq, x, g == 0, ("B", 4*g))
        addr(wread(wk, ("w", "B", 1, s), ks), st, fl)
        addm(BK, wk, x, g == 0, ("B", 4*g+1))
        addr(wread(wv, ("w", "B", 2, s), ks), st, fl)
        addm(BV, x, wv, g == 0, ("B", 4*g+2))
        addr([(f"ds_read_b128 {vr(xh,4)}, v{6+ks} offset:{L_H + s*2048}", xh)], st, fl)
        M.append(dict(txt="@" + mfma(BH, wk, xh, BH if g else None) + "@" + mfma(BH, xh, wv, BH if g else None), src=(wk, xh, wv), tag=("B", 4*g+3)))

    st = dict(ri=0, issued=[], done=0, bar=-1, chk=None)
    vq = []
    def wait_upto(n):
        if st["done"] < n:
            k = min(15, len(st["issued"]) - n); a(f"s_waitcnt lgkmcnt({k})"); st["done"] = len(st["issued"]) - k
    def lds_op(t, stage):
        wait_upto(len(st["issued"]) - 14); a(t); st["issued"].append(stage)
    def retire(upto):
        idx = [i for i, x in enumerate(st["issued"]) if x <= upto]
        if idx: wait_upto(max(idx) + 1)
    def b_issue(p): issue(p, LX, LW); vq.extend([p[-1]] * 2)
    def arrive(s):
        retire(12 + s - 2)
        a(f"s_waitcnt vmcnt({len(vq) - 1 - max(i for i, x in enumerate(vq) if x == s)})")
        lds_op(f"ds_write_b32 v{VS}, v{VV}", 99)
    def barrier(s):
        if s < 12:
            retire(s - 2)
            a(f"s_barrier   ; {stages[s]['n']}")
            if s == 0: stamp(1)
        else:
            if st["chk"] is not None: wait_upto(st["chk"])
            if cfg.vprio != cfg.gprio: a(f"s_setprio {cfg.vprio}")
            lds_wait(VA, VC, s - 12 + 1, preloaded=st["chk"] is not None)
            a(f"v_mov_b32 v{VV}, {s - 12 + 2}")
            if cfg.vprio != cfg.gprio: a(f"s_setprio {cfg.gprio}")
            if st["chk"] is None: st["done"] = len(st["issued"])
            st["chk"] = None
            if cfg.tailst == 2: a(f"s_memtime s[{4+2*(s-12)}:{5+2*(s-12)}]\ns_waitcnt lgkmcnt(0)")
        st["bar"] = s
    pos = {}
    def issue_reads(i, lim):
        while st["ri"] < len(R) and R[st["ri"]]["need"] <= lim and R[st["ri"]]["after"] <= i:
            r = R[st["ri"]]
            if r["stage"] > st["bar"]: barrier(r["stage"])
            lds_op(r["txt"], r["stage"]); pos[st["ri"]] = len(st["issued"]); st["ri"] += 1
    def pace(): a(f"s_waitcnt vmcnt({2 * (cfg.bdepth - 1)})")
    def b_first():
        for p in bst[0]:
            if p not in pre: b_issue(p); pace()
        b_issue(bst[1][0]); pace()
        for q in range(2):
            a(f"""
s_lshl_b32 s{S_T1}, s{S_LB}, 1
s_add_u32 m0, s{S_T1}, {L_H + q*2048}
s_lshr_b32 s{S_T0}, s{S_LB}, 3
s_add_u32 s{S_T0}, s{S_T0}, s{S_ROT}
s_add_u32 s{S_T0}, s{S_T0}, {q*128}
s_and_b32 s{S_T0}, s{S_T0}, 1023
buffer_load_dwordx4 v{LH}, {sr(S_XB)}, s{S_T0} offen lds
buffer_load_dwordx4 v{LH+1}, {sr(S_XB)}, s{S_T0} offen offset:1024 lds
""")
            vq.extend([0] * 2); pace()
        for p in bst[1][1:]: b_issue(p)
    def wo_issue(sl):
        a(f"""
s_add_u32 m0, s{S_LB}, {sl*8192}
s_add_u32 s{S_T0}, s{S_PP}, {(sl%8)*65536}
s_and_b32 s{S_T0}, s{S_T0}, 0x7ffff
buffer_load_dwordx4 v{WO}, {sr(S_WOB if sl < 8 else S_WOA)}, s{S_T0} offen lds
buffer_load_dwordx4 v{WO+1}, {sr(S_WOB if sl < 8 else S_WOA)}, s{S_T0} offen offset:1024 lds
""")
        vq.extend([99] * 2)
    def q_end():
        S0, S1 = 16, 32
        kstate["k"] = None
        a("s_nop 11")
        for i in range(16): a(f"v_mul_f32 v{ACQ+i}, s{S_C}, v{ACQ+i}")
        for i in range(8): a(f"v_cvt_pk_bf16_f32 v{QBF+i}, v{ACQ+2*i}, v{ACQ+2*i+1}")
        a(f"""
ds_write_b128 v{QXA}, {vr(QBF,4)}
{mfma(S0, KBF, QBF, None)}
{mfma(S1, KBF+4, QBF+4, None)}
ds_write_b128 v{QXA}, {vr(QBF+4,4)} offset:2048
s_nop 9
""")
        for e, Sx in enumerate((S0, S1)):
            m = NEGM + e
            a(f"v_max3_f32 v{m}, v{Sx}, v{Sx+1}, v{Sx+2}")
            for i in range(3, 15, 2): a(f"v_max3_f32 v{m}, v{m}, v{Sx+i}, v{Sx+i+1}")
            a(f"v_max_f32 v{m}, v{m}, v{Sx+15}\nv_mov_b32 v{Sx}, v{m}")
        a("s_nop 1")
        for e, Sx in enumerate((S0, S1)): a(f"v_permlane32_swap_b32 v{NEGM+e}, v{Sx}")
        a("s_nop 1")
        for e, Sx in enumerate((S0, S1)): a(f"v_max_f32 v{NEGM+e}, v{NEGM+e}, v{Sx}\nv_sub_f32 v{NEGM+e}, 0, v{NEGM+e}")
        a(f"ds_write_b32 v{QXA+1}, v{NEGM}\nds_write_b32 v{QXA+1}, v{NEGM+1} offset:512\ns_waitcnt lgkmcnt(0)\ns_barrier   ; hand-over")
        st["done"] = len(st["issued"])
        a(f"s_setprio 0\nv_mov_b32 v{VV}, 1")
        a(f"""
v_mov_b32 v162, 0x1fe
v_mov_b32 v163, 0
v_lshlrev_b64 v[162:163], v14, v[162:163]
v_lshlrev_b32 v164, 2, v15
v_lshrrev_b64 v[162:163], v164, v[162:163]
v_alignbit_b32 v163, v163, v162, 8
v_not_b32 v163, v163
v_not_b32 v162, v162
v_or_b32 v162, s{S_HM}, v162
v_mov_b32 v164, 0x07070303
""")
        for aa in range(4):
            for b in range(4): a(f"v_bfe_i32 v{MD+4*aa+b}, v163, {8*aa+b}, 1\nv_lshlrev_b32 v{MD+4*aa+b}, 23, v{MD+4*aa+b}")
        for b in range(4): a(f"v_bfe_i32 v{MP+b}, v162, {b}, 1\nv_lshlrev_b32 v{MP+b}, 23, v{MP+b}")
        for k in range(8): a(f"v_perm_b32 v{MA+k}, v{MD+2*k+1}, v{MD+2*k}, v164")
        for k in range(2): a(f"v_perm_b32 v{MA+8+k}, v{MP+2*k+1}, v{MP+2*k}, v164")
        lds_wait(VA, VC, 1, off=16); lds_wait(VA, VC, 1, off=32)
        b_first()
        a(f"s_setprio {cfg.gprio}")
        arrive(0)
    issue_reads(-1, cfg.la - 1)
    for i, m in enumerate(M):
        needed = [k for k, r in enumerate(R) if r["need"] == i]
        if needed:
            assert max(needed) < st["ri"], (i, m)
            wait_upto(pos[max(needed)])
        a(m["txt"])
        if m["tag"] == ("V", 31):
            stamp(2)
            a("s_nop 9")
            a(f"s_mov_b32 s{S_T2}, 0x20000")
            for k in range(8): a(f"v_cvt_pk_bf16_f32 v{KBF+k}, v{ACK+2*k}, v{ACK+2*k+1}")
            a(f"buffer_store_dwordx4 {vr(KBF,4)}, v12, {sr(S_WS)}, 0 offen sc1")
            a(f"buffer_store_dwordx4 {vr(KBF+4,4)}, v12, {sr(S_WS)}, s{S_T2} offen sc1")
            for k in range(8): a(f"v_cvt_pk_bf16_f32 v{VBF+k}, v{ACV+2*k}, v{ACV+2*k+1}")
            a(f"buffer_store_dwordx4 {vr(VBF,4)}, v13, {sr(S_WS)}, 0 offen offset:1024 sc1")
            a(f"buffer_store_dwordx4 {vr(VBF+4,4)}, v13, {sr(S_WS)}, 0 offen offset:1536 sc1")
            a(f"buffer_load_dword v12, v0, {sr(S_DBG)}, 0 offen sc1")
        if m["tag"] == ("Q", cfg.pubg):
            poll(0, 8, S_DBG, 12, preloaded=True)
            a(f"v_mov_b32 v12, 1\ns_mov_b64 exec, 1\nbuffer_store_dword v12, v0, {sr(S_WS)}, s{S_FL} offen sc1\ns_mov_b64 exec, -1")
            stamp(4)
        if m["tag"] == ("Q", 31):
            stamp(3)
            q_end()
        if m["tag"][0] == "B":
            s, p_ = m["tag"][1] // 16, m["tag"][1] % 16
            if s < 7 and p_ == 5: arrive(s + 1)
            if s < 7 and p_ == 9: lds_op(f"ds_read_b32 v{VC}, v{VA}", 99); st["chk"] = len(st["issued"])
            if s < 6 and p_ in (0, 3, 6, 9): b_issue(bst[s + 2][p_ // 3])
            if s >= 6 and p_ in (0, 4, 8, 12): wo_issue(s - 6 + [0, 8, 10, 12][p_ // 4])
        la = cfg.lab if (m["tag"][0] == "B" or m["tag"] == ("Q", 31)) else (5 if m["tag"][0] == "Q" or m["tag"] == ("V", 31) else cfg.la)
        issue_reads(i, i + la)
        if m["tag"] == ("Q", 31):
            a(f"s_bitcmp1_b32 s{S_WAVE}, 0\ns_cbranch_scc1 L_bodd")
            fork = len(a.L)
    assert st["ri"] == len(R) and st["bar"] == 19

    QB, KB, KHB, VB, VHB = 80, 88, 96, 104, 112
    SD, SP, OO = (16, 32), (48, 64), (16, 32)
    PD, PP = (48, 64), (56, 72)
    Z = (2, 152)
    def progress(v, wait="lgkmcnt(0)"): a(f"v_mov_b32 v{VV}, {v}\ns_waitcnt {wait}\nds_write_b32 v{VS}, v{VV}")
    shared = a.L[fork:]; del a.L[fork:]
    labs = [l[:-1] for l in shared if l.endswith(":") and not l.startswith(";")]
    for par in (0, 1):
        if par: a("L_bodd:")
        for l in shared:
            if l.strip().startswith("@"): l = "    " + l.strip().split("@")[1 + par]
            if par:
                for lb in labs: l = re.sub(rf"\b{lb}\b", lb + "_o", l)
            a.L.append(l)
        a(f"""
s_setprio {cfg.vprio}
s_lshr_b32 s{S_T0}, s{S_WAVE}, 1
s_lshl_b32 s{S_T1}, s{S_T0}, 11
s_add_u32 s{S_T1}, s{S_T1}, {L_HX}
s_lshl_b32 s{S_T0}, s{S_T0}, 9
s_add_u32 s{S_T0}, s{S_T0}, {L_HX + 4096}
v_lshlrev_b32 v12, 4, v1
v_lshl_add_u32 v11, v1, 3, s{S_T0}
s_nop 0
v_xor_b32 v10, {128 * par}, v12
v_add_u32 v10, s{S_T1}, v10
""")
        for k in range(8): a(f"v_cvt_pk_bf16_f32 v{QB+k}, v{BQ+2*k}, v{BQ+2*k+1}")
        if par == 0:
            for k in range(8): a(f"v_cvt_pk_bf16_f32 v{KHB+k}, v{BH+2*k}, v{BH+2*k+1}")
            a(f"ds_write_b128 v10, {vr(KHB,4)}\nds_write_b128 v10, {vr(KHB+4,4)} offset:1024")
        else:
            for k in range(4): a(f"v_cvt_pk_bf16_f32 v{VHB+(k^2)}, v{BH+2*k}, v{BH+2*k+1}")
            a(f"ds_write_b64 v11, {vr(VHB+2,2)}")
        for k in range(8): a(f"v_cvt_pk_bf16_f32 v{KB+k}, v{BK+2*k}, v{BK+2*k+1}")
        progress(G_BDONE)
        stamp(5)
        for k in range(4): a(f"v_cvt_pk_bf16_f32 v{VB+k}, v{BV+2*k}, v{BV+2*k+1}")
        a(mfma(SD[0], KB, QB, MD))
        for k in range(4, 8): a(f"v_cvt_pk_bf16_f32 v{VB+k}, v{BV+2*k}, v{BV+2*k+1}")
        a(mfma(SD[1], KB+4, QB+4, MD))
        lds_wait(VA, VC, G_BDONE)
        if par == 0:
            a(f"ds_read_b64 {vr(VHB,2)}, v11\nv_mov_b64 {vr(VHB+2,2)}, 0\ns_branch L_bjoin")
        else:
            a(f"ds_read_b128 {vr(KHB,4)}, v10\nds_read_b128 {vr(KHB+4,4)}, v10 offset:1024")
    a("L_bjoin:\ns_waitcnt lgkmcnt(0)")
    a(mfma(SP[0], KHB, QB, MP))
    a(mfma(SP[1], KHB+4, QB+4, MP))
    wo_issue(2)
    for e in range(2):
        for b in range(4): a(f"v_max3_f32 v{Z[e]+b}, v{SD[e]+b}, v{SD[e]+4+b}, v{SD[e]+8+b}")
    for e in range(2):
        z = Z[e]
        for b in range(4): a(f"v_max3_f32 v{z+b}, v{z+b}, v{SD[e]+12+b}, v{SP[e]+b}")
        a(f"v_max3_f32 v{z+4}, v{z}, v{z+1}, v{z+2}\nv_max_f32 v{z+4}, v{z+4}, v{z+3}\nv_mov_b32 v{z+5}, v{z+4}")
    for e in range(2): a(f"v_mov_b64 {vr(PP[e]+2,2)}, 0")
    for e in range(2): a(f"v_permlane32_swap_b32 v{Z[e]+4}, v{Z[e]+5}")
    a("s_nop 1")
    for e in range(2):
        z = Z[e]
        a(f"v_max_f32 v{z+4}, v{z+4}, v{z+5}\nv_mul_f32 v{z+4}, s{S_C}, v{z+4}")
        for b in range(4): a(f"v_fma_f32 v{z+b}, v{z+b}, s{S_C}, -v{z+4}")
        for b in range(4): a(f"v_exp_f32 v{z+b}, v{z+b}")
    for e in range(2):
        z = Z[e]
        a(f"v_add_f32 v{z+4}, v{z}, v{z+1}\nv_add_f32 v{z+5}, v{z+2}, v{z+3}\nv_add_f32 v{z+4}, v{z+4}, v{z+5}\nv_mov_b32 v{z+5}, v{z+4}")
    a("s_nop 1")
    for e in range(2): a(f"v_permlane32_swap_b32 v{Z[e]+4}, v{Z[e]+5}")
    wo_issue(3)
    for e in range(2): a(f"v_add_f32 v{Z[e]+4}, v{Z[e]+4}, v{Z[e]+5}")
    for e in range(2): a(f"v_rcp_f32 v{Z[e]+4}, v{Z[e]+4}")
    a("s_nop 0")
    for e in range(2):
        z = Z[e]
        for b in range(4): a(f"v_mul_f32 v{z+b}, v{z+b}, v{z+4}")
        a(f"v_cvt_pk_bf16_f32 v{z}, v{z}, v{z+1}\nv_cvt_pk_bf16_f32 v{z+1}, v{z+2}, v{z+3}")
        for k in range(8): a(f"v_bfi_b32 v{PD[e]+k}, v{MA+k}, 0, v{z+(k&1)}")
        for k in range(2): a(f"v_bfi_b32 v{PP[e]+k}, v{MA+8+k}, 0, v{z+k}")
        a(mfma(OO[e], VB, PD[e], None)); a(mfma(OO[e], VB+4, PD[e]+4, OO[e])); a(mfma(OO[e], VHB, PP[e], OO[e]))
    for k in range(4): a(f"v_cvt_pk_bf16_f32 v{QB+k}, v{OO[0]+2*k}, v{OO[0]+2*k+1}")
    a(f"""
; O_B out; the O_A slots of head w are marked "not written yet" (all-ones words)
v_mov_b64 v[88:89], -1
v_mov_b64 v[90:91], -1
s_add_u32 s{S_T1}, s{S_OAO}, 32768
buffer_store_dwordx4 {vr(QB,4)}, v12, {sr(S_WS)}, s{S_OBO} offen sc1
buffer_store_dwordx4 v[88:91], v12, {sr(S_WS)}, s{S_OAO} offen sc1
buffer_store_dwordx4 v[88:91], v12, {sr(S_WS)}, s{S_T1} offen sc1
s_nop 1
""")
    for k in range(4): a(f"v_cvt_pk_bf16_f32 v{QB+4+k}, v{OO[1]+8+2*k}, v{OO[1]+8+2*k+1}")
    a(f"buffer_store_dwordx4 {vr(QB+4,4)}, v12, {sr(S_WS)}, s{S_OBO} offen offset:1024 sc1")
    stamp(6)
    wo_issue(4)
    a(f"""
s_lshr_b32 s{S_T1}, s{S_WAVE}, 1
v_bfe_u32 v16, v1, 2, 2              ; r4
v_lshl_add_u32 v17, v15, 2, v16      ; 4h + r4
v_and_b32 v18, 1, v1
v_lshlrev_b32 v18, 5, v18            ; 32B * (c4&1)
v_bfe_u32 v19, v1, 4, 1
v_lshl_add_u32 v18, v19, 4, v18      ; + 16B * g'
v_bfe_u32 v19, v1, 1, 1
v_lshl_add_u32 v18, v19, 3, v18      ; + 8B * (c4>>1)
v_bfe_u32 v19, v1, 3, 1
v_xor_b32 v19, s{S_T1}, v19
v_lshl_add_u32 v18, v19, 6, v18
v_lshl_add_u32 v20, v17, 7, v18
s_lshl_b32 s{S_T2}, s{S_T1}, 15
v_add_u32 v20, s{S_T2}, v20
v_xor_b32 v21, 64, v20
s_lshl_b32 s{S_T0}, s{S_NB}, 7
s_lshl_b32 s{S_T3}, s{S_RBO}, 17
s_add_u32 s{S_T3}, s{S_T3}, s{S_T0}
s_lshl_b32 s{S_T0}, s{S_T1}, 6
s_add_u32 s{S_T3}, s{S_T3}, s{S_T0}
s_and_b32 s{S_T0}, s{S_WAVE}, 1
v_lshl_add_u32 v22, v14, 1, s{S_T0}
v_lshlrev_b32 v22, 11, v22
v_lshl_add_u32 v22, v15, 5, v22
v_add_u32 v22, 1024, v22
s_lshl_b32 s{S_T2}, s{S_T0}, 5
v_add_u32 v23, s{S_T2}, v14
v_lshlrev_b32 v23, 11, v23
v_lshl_add_u32 v23, v15, 5, v23
s_lshl_b32 s{S_T2}, s{S_RBO}, 16
s_lshl_b32 s{S_T0}, s{S_T0}, 15
s_add_u32 s{S_T2}, s{S_T2}, s{S_T0}
s_add_u32 s{S_T2}, s{S_T2}, {WS_OB}
s_lshl_b32 s{S_T1}, s{S_T1}, 2
s_add_u32 s{S_T1}, s{S_T1}, s{S_PIT}
""")
    for g in range(4):
        a(f"s_add_u32 s{S_T0}, s{S_T1}, {g}\ns_and_b32 s{S_T0}, s{S_T0}, 7\ns_lshl_b32 s{S_T0}, s{S_T0}, 12\ns_add_u32 s{S_G[g]}, s{S_T2}, s{S_T0}")
    a(f"""
s_lshl_b32 s{S_T0}, s{S_RBO}, 7
s_add_u32 s{S_T0}, s{S_T0}, {FL_KV + 16}
v_lshrrev_b32 v8, 2, v1
v_add_u32 v8, s{S_T1}, v8
v_and_b32 v8, 7, v8
v_lshlrev_b32 v8, 12, v8
v_and_b32 v7, 3, v1
v_lshl_add_u32 v8, v7, 2, v8
v_add_u32 v8, s{S_T0}, v8
s_lshl_b32 s{S_T0}, s{S_WAVE}, 12
v_add_u32 v10, s{S_T0}, v12
v_xor_b32 v11, 0x2000, v10
v_xor_b32 v13, 8, v{VS}
v_mov_b32 v7, 1
""")
    wo_issue(5)
    progress(G_MARK, "vmcnt(0)")
    a(f"s_mov_b64 exec, 1\nbuffer_store_dword v7, v0, {sr(S_WS)}, s{S_FL} offen offset:16 sc1\ns_mov_b64 exec, -1")
    for sl in (6, 7, 14, 15):
        wo_issue(sl); a(f"s_waitcnt vmcnt({2 * (cfg.wodepth - 1)})")
    progress(G_WO, "vmcnt(0)")
    stamp(7)
    poll(8, 16, S_WS, 7)
    stamp(8)
    OF = [64 + 4*j for j in range(16)]
    AK, AS = 32, 48
    def ofrag_loads(g0, g1):
        for j in range(4*g0, 4*g1):
            a(f"buffer_load_dwordx4 {vr(OF[j],4)}, v12, {sr(S_WS)}, s{S_G[j//4]} offen offset:{(j%4)*1024} sc1")
    def wrd(j):
        b = 128 + 8 * (j % 3)
        for cb in range(2):
            a(f"ds_read_b64_tr_b16 {vr(b+4*cb,2)}, v{20+cb} offset:{j*2048}")
            a(f"ds_read_b64_tr_b16 {vr(b+4*cb+2,2)}, v{20+cb} offset:{j*2048 + 1024}")
    def omm(j):
        b = 128 + 8 * (j % 3)
        a(f"s_waitcnt lgkmcnt({4*min(2, 15-j)})")
        a(mfma(AS, b+4, OF[j], AS if j else None))
        a(mfma(AK, b, OF[j], AK if j else None))
        if j + 3 < 16: wrd(j + 3)
    def finish(vout):
        for k in range(4): a(f"ds_read_b128 {vr(AS+4*k,4)}, v11 offset:{k*1024}")
        for k in range(4):
            a(f"s_waitcnt lgkmcnt({3-k})")
            for i in range(4): a(f"v_add_f32 v{AK+4*k+i}, v{AK+4*k+i}, v{AS+4*k+i}")
            for i in range(2): a(f"v_cvt_pk_bf16_f32 v{24+2*k+i}, v{AK+4*k+2*i}, v{AK+4*k+2*i+1}")
            if k % 2: a(f"buffer_store_dwordx4 {vr(24+2*(k-1),4)}, v{vout}, {sr(S_OUT)}, s{S_T3} offen offset:{8*(k-1)}")
    ofrag_loads(0, 1)
    lds_wait(VA, VC, G_WO)
    a(f"s_setprio {cfg.oprio}")
    for j in range(3): wrd(j)
    for g in range(4):
        a("s_waitcnt vmcnt(0)")
        if g < 3: ofrag_loads(g + 1, g + 2)
        for j in range(4*g, 4*g+4): omm(j)
    a(f"s_setprio {cfg.vprio}")
    progress(G_BRD)
    lds_wait(VA, VC, G_BRD)
    a("s_nop 3")
    for k in range(4): a(f"ds_write_b128 v10, {vr(AS+4*k,4)} offset:{k*1024}")
    progress(G_BX)
    lds_wait(13, VC, G_BX)
    finish(22)
    stamp(9)
    a(f"v_add_u32 v20, {L_WOA}, v20\nv_add_u32 v21, {L_WOA}, v21\nv_add_u32 v10, 0x4000, v10\nv_add_u32 v11, 0x4000, v11")
    for g in range(4): a(f"s_sub_u32 s{S_G[g]}, s{S_G[g]}, {WS_OB - WS_OA}")
    for j in range(3): wrd(j)
    a(f"s_mov_b32 s{S_SPIN}, {cfg.spin}\ns_setprio 3\ns_barrier   ; the A waves of this workgroup are done")
    stamp(13)
    for g in range(4):
        ofrag_loads(g, g + 1)
        if g < 3: a("s_barrier")
    def ocheck(g):
        r = OF[4*g]
        a(f"v_max3_u32 v9, v{r}, v{r+1}, v{r+2}")
        for i in range(3, 15, 2): a(f"v_max3_u32 v9, v9, v{r+i}, v{r+i+1}")
        a(f"v_max_u32 v9, v9, v{r+15}\nv_cmp_eq_u32 vcc, -1, v9")
    for g in range(4):
        a(f"s_waitcnt vmcnt({12-4*g})")
        ocheck(g)
        a(f"s_cbranch_vccnz L_retry{g}\nL_ok{g}:")
        if cfg.tailst == 1: stamp(1 + g)
        if cfg.tailst == 1 and g == 3: a(f"s_sub_u32 s{S_STAMP+5}, {cfg.spin}, s{S_SPIN}\ns_add_u32 s{S_STAMP+5}, s{S_STAMP+5}, s94")
        for j in range(4*g, 4*g+4): omm(j)
    a("s_nop 10")
    for k in range(4): a(f"ds_write_b128 v10, {vr(AS+4*k,4)} offset:{k*1024}")
    a("s_waitcnt lgkmcnt(0)\ns_barrier")
    finish(23)
    stamp(14)
    if cfg.probe >= -1:
        if cfg.probe == 15: a("s_waitcnt vmcnt(0)"); stamp(15)
        if cfg.probe == -1: a("s_mov_b32 s4, s92")
        a("s_add_u32 s4, s4, 6000\ns_mov_b32 s5, 200000\nL_pad:\ns_memrealtime s[90:91]\ns_waitcnt lgkmcnt(0)\ns_sub_u32 s6, s90, s4\ns_cmp_ge_i32 s6, 0\ns_cbranch_scc1 L_exit\ns_sub_u32 s5, s5, 1\ns_cmp_lg_u32 s5, 0\ns_cbranch_scc1 L_pad")
    if cfg.stamps:
        a("s_branch L_dump\nL_end:\ns_barrier\ns_barrier\ns_barrier\ns_barrier\nL_dump:")
        a(f"s_waitcnt vmcnt(0)\ns_memtime s[90:91]\ns_memrealtime s[96:97]\ns_waitcnt lgkmcnt(0)\ns_mov_b32 s{S_STAMP+15}, s90")
        a(f"s_mov_b32 s{S_STAMP+16}, s94\ns_mov_b32 s{S_STAMP+17}, s92\ns_mov_b32 s{S_STAMP+18}, s96\ns_getreg_b32 s{S_STAMP+19}, hwreg(HW_REG_XCC_ID)")
        a(f"s_lshl_b32 s{S_T0}, s2, 4\ns_add_u32 s{S_T0}, s{S_T0}, s{S_WAVE}\ns_lshl_b32 s{S_T0}, s{S_T0}, 7\ns_add_u32 s{S_T0}, s{S_T0}, {WS_ST}")
        a("v_mov_b32 v8, 0\ns_mov_b64 exec, 1")
        for i in range(5):
            for k in range(4): a(f"v_mov_b32 v{12+k}, s{S_STAMP+4*i+k}")
            a(f"buffer_store_dwordx4 v[12:15], v8, {sr(S_WS)}, s{S_T0} offen offset:{16*i}\ns_nop 1")
    else: a("L_end:")
    a("L_exit:\ns_endpgm")
    for g in range(4):
        a(f"L_retry{g}:\ns_cmp_eq_u32 s{S_SPIN}, 0\ns_cbranch_scc1 L_ok{g}\ns_sub_u32 s{S_SPIN}, s{S_SPIN}, 1")
        ofrag_loads(g, g + 1)
        a("s_waitcnt vmcnt(0)")
        ocheck(g)
        a(f"s_cbranch_vccnz L_retry{g}")
        ofrag_loads(g + 1, 4)
        a(f"s_branch L_ok{g}")
    a("L_code_end:")

    head = open("cdna_kernels/" + NAME + ".s.ref").read().split("\n")
    top = [l for l in head if l.startswith(";") and "@launch" not in l and not l.startswith("; Override") and not l.startswith("; grid=")]
    out = "\n".join(top) + f"""
; @launch grid=(256,1,1) block=(768,1,1) lds={LDS_BYTES}
.amdgcn_target "amdgcn-amd-amdhsa--gfx950"
.text
.globl {NAME}_kernel
.p2align 8
.type {NAME}_kernel,@function
{NAME}_kernel:
""" + a.text() + f""".section .rodata,"a"
.p2align 6
.amdhsa_kernel {NAME}_kernel
  .amdhsa_next_free_vgpr 168
  .amdhsa_next_free_sgpr 102
  .amdhsa_accum_offset 168
  .amdhsa_group_segment_fixed_size 0
  .amdhsa_kernarg_size 72
  .amdhsa_user_sgpr_count 2
  .amdhsa_user_sgpr_kernarg_segment_ptr 1
  .amdhsa_system_sgpr_workgroup_id_x 1
.end_amdhsa_kernel
"""
    return out

if __name__ == "__main__":
    cfg = Cfg()
    outp = "cdna_kernels/" + NAME + ".s"
    for arg in sys.argv[1:]:
        if arg.startswith("-o"): outp = arg[2:]
        else:
            k, v = arg.split("="); setattr(cfg, k, type(getattr(Cfg, k))(int(v)))
    open(outp, "w").write(gen(cfg))
    import subprocess
    r = subprocess.run(["clang", "-x", "assembler", "-target", "amdgcn-amd-amdhsa", "-mcpu=gfx950", "-c", outp, "-o", "gen_chk.o"], capture_output=True, text=True)
    if r.returncode: print(r.stderr); sys.exit(1)
    print("wrote", outp)
```

```python
import sys, math, struct, re

NAME = "concat_heads__softmax_full_mha__sliding_local_dilated__prompt"

class Cfg:
    prio_iter = 6
    spin = 400000
    map48 = 0
    depth = 6
    rot = 7
    rotb = 7
    pre = 0
    bdepth = 2
    pubg = 15
    gprio = 0
    la = 6
    stb = 0
    sta = 0
    nbg = 1
    marks = 1
    hw = 2
    csleep = 1
    psleep = 12
    lab = 3
    vprio = 3
    oprio = 0
    wodepth = 2
    cpf = 1
    ackwait = 1
    force_fallback = False
    stamps = False
    probe = -2
    rt = 0
    tailst = 0
    nowait = 0

def f32(x): return "0x%08x" % struct.unpack("<I", struct.pack("<f", x))[0]

WS_KV = 0
WS_OA = 4 << 20
WS_OB = 6 << 20
WS_FL = 8 << 20
FL_KV = WS_FL
FL_OB = WS_FL + 256 * 128
FL_MK = WS_FL + 512 * 128
WS_ST = WS_FL + 768 * 128
WS_HL = 9 << 20
WS_SIZE = 10 << 20

L_W = 3 * 8192
L_QX = 0
L_VR = 15 * 8192
L_MX = 155648
L_SY = L_MX + 2048
L_FX = L_SY + 64
L_WOB = 0
L_WOA = 7 * 8192
LDS_BYTES = 163840
G_BDONE, G_MARK, G_WO, G_BRD, G_BX = 16, 17, 18, 19, 20

S_XA, S_WA, S_WOA, S_XB, S_WB, S_WOB, S_OUT, S_DBG, S_WS = 24, 28, 32, 36, 40, 44, 48, 52, 56
S_WAVE, S_RB, S_HG, S_OBO, S_OAO, S_RBO, S_NB = 60, 61, 62, 63, 64, 65, 66
S_T0, S_T1, S_T2, S_T3 = 67, 68, 69, 70
S_LB, S_ROT, S_KX, S_KW = 71, 72, 73, 74
S_G = [76, 77, 78, 79]
S_MASK = 80
S_OFF, S_IT, S_PP, S_PIT, S_FL, S_PASS, S_SPIN, S_C = 82, 83, 84, 85, 86, 87, 88, 89
S_OUTO, S_HLO = 100, 101
S_HM = 75
S_STAMP = 4

class Asm:
    def __init__(self): self.L = []; self.nlab = 0
    def __call__(self, s):
        for line in s.strip("\n").split("\n"):
            line = line.strip()
            if not line: continue
            if line.endswith(":") or line.startswith(";") or line.startswith("."): self.L.append(line)
            else: self.L.append("    " + line)
    def lab(self, p="L"):
        self.nlab += 1; return f"{p}_{self.nlab}"
    def text(self): return "\n".join(self.L) + "\n"

def vr(a, n): return f"v[{a}:{a+n-1}]"
def sr(a, n=4): return f"s[{a}:{a+n-1}]"
def mfma(d, a_, b_, c): return f"v_mfma_f32_32x32x16_bf16 {vr(d,16)}, {vr(a_,4)}, {vr(b_,4)}, {vr(c,16) if c is not None else 0}"

def gen(cfg):
    a = Asm()
    def stamp(i):
        if cfg.tailst == 2: return
        if cfg.probe == i:
            a(f"s_memrealtime s[90:91]\ns_waitcnt lgkmcnt(0)\ns_mov_b32 s4, s90")
        if cfg.stamps:
            a(f"{'s_memrealtime' if cfg.rt else 's_memtime'} s[90:91]\ns_waitcnt lgkmcnt(0)\ns_mov_b32 s{S_STAMP+i}, s90")
    def set_exec(nlanes):
        if nlanes < 32: a(f"s_mov_b64 exec, {hex((1 << nlanes) - 1)}")
        elif nlanes == 32: a("s_mov_b32 exec_hi, 0")
    def poll(voff, nlanes, srdi, tmp, preloaded=False, sleep=0):
        lp, dn, ck = a.lab("L_poll"), a.lab("L_pdone"), a.lab("L_pchk")
        set_exec(nlanes)
        a(f"s_mov_b32 s{S_SPIN}, {cfg.spin}")
        if preloaded: a(f"s_branch {ck}")
        a(f"{lp}:")
        a(f"buffer_load_dword v{tmp}, v{voff}, {sr(srdi)}, 0 offen sc1")
        a(f"{ck}:")
        a(f"s_waitcnt vmcnt(0)")
        a(f"v_cmp_ne_u32 vcc, 1, v{tmp}")
        a(f"s_cbranch_vccz {dn}")
        if sleep: a(f"s_sleep {sleep}")
        a(f"s_sub_u32 s{S_SPIN}, s{S_SPIN}, 1\ns_cmp_lg_u32 s{S_SPIN}, 0\ns_cbranch_scc1 {lp}")
        a(f"{dn}:")
        a("s_mov_b64 exec, -1")
    def lds_wait(vaddr, tmp, val, off=0, preloaded=False, sleep=0):
        l0, l1 = a.lab(), a.lab()
        if preloaded: a(f"v_cmp_gt_u32 vcc, {val}, v{tmp}\ns_cbranch_vccz {l1}")
        a(f"""
s_mov_b32 s{S_SPIN}, {cfg.spin}
{l0}:
ds_read_b32 v{tmp}, v{vaddr} offset:{off}
s_waitcnt lgkmcnt(0)
v_cmp_gt_u32 vcc, {val}, v{tmp}
s_cbranch_vccz {l1}
{'s_sleep %d' % sleep if sleep else ''}
s_sub_u32 s{S_SPIN}, s{S_SPIN}, 1
s_cmp_lg_u32 s{S_SPIN}, 0
s_cbranch_scc1 {l0}
{l1}:
""")

    stages = []
    for s in range(8): stages.append(dict(n=f"KV{s}", p=[("x", "A", s), ("w", "A", 1, s), ("w", "A", 2, s)]))
    for s in range(4): stages.append(dict(n=f"Q{s}", p=[("w", "A", 0, 2*s), ("w", "A", 0, 2*s+1)]))
    stage_of = {p: si for si, st in enumerate(stages) for p in st["p"]}
    seq = [p for st in stages for p in st["p"]]
    pre = [("w", "B", ty, 0) for ty in range(cfg.pre)]
    assert not pre or cfg.rot == cfg.rotb
    for p in pre: seq.append(p); stage_of[p] = 12
    D = cfg.depth
    land = {si: max(seq.index(p) for p in st["p"]) for si, st in enumerate(stages)}
    slot = {("x", "A", s): s for s in range(8)}; busy = {k: None for k in range(8, 19)}
    prog = []; nxt = [0]; passed = [-1]
    def try_issue(lim):
        while nxt[0] < min(lim, len(seq)):
            p = seq[nxt[0]]
            if p[0] == "w":
                ok = [k for k in busy if busy[k] is None or passed[0] >= busy[k] + 2]
                if not ok: return
                k = min(ok, key=lambda k: (-1 if busy[k] is None else busy[k]))
                busy[k] = stage_of[p]; slot[p] = k
            prog.append(("issue", p)); nxt[0] += 1
    try_issue(D); prog.append(("start",))
    for j in range(len(seq) - len(pre)):
        assert nxt[0] > j
        prog.append(("wait", j, nxt[0]))
        try_issue(j + 1 + D)
        for si in [si for si in land if land[si] == j]:
            prog.append(("bar", si)); passed[0] = si
            try_issue(j + 1 + D)
    assert nxt[0] == len(seq)
    grp = [[9, 4, 6], [8, 3, 5], [7, 10, 11], [12, 13, 14]]
    assert len(pre) <= 1
    src = [slot[p] for p in pre]; src += [k for k in range(8, 19) if k not in src]
    dst = grp[0][:len(pre)]; dst += [k for k in range(8, 19) if k not in dst]
    ren = dict(zip(src, dst))
    for p in slot:
        if p[0] == "w": slot[p] = ren[slot[p]]
    bst = [[("x", "B", s), ("w", "B", 0, s), ("w", "B", 1, s), ("w", "B", 2, s)] for s in range(8)]
    for s in range(8):
        slot[("x", "B", s)] = s % 3
        for ty in range(3): slot[("w", "B", ty, s)] = grp[s % 4][ty]

    kstate = {"k": None}
    def set_k(k):
        if kstate["k"] == k: return False
        if k: a(f"s_add_u32 s{S_KX}, s{S_ROT}, {k*128}\ns_and_b32 s{S_KX}, s{S_KX}, 1023")
        else: a(f"s_mov_b32 s{S_KX}, s{S_ROT}")
        a(f"s_mul_i32 s{S_KW}, s{S_KX}, 1536")
        kstate["k"] = k; return True
    def issue(p, vx, vw):
        if p[0] == "x":
            _, br, k = p
            a(f"s_add_u32 m0, s{S_LB}, {slot[p]*8192}")
            if not set_k(k): a("s_nop 0")
            srdi = S_XA if br == "A" else S_XB
            a(f"buffer_load_dwordx4 v{vx}, {sr(srdi)}, s{S_KX} offen lds")
            a(f"buffer_load_dwordx4 v{vx+1}, {sr(srdi)}, s{S_KX} offen offset:1024 lds")
        else:
            _, br, ty, k = p
            set_k(k)
            a(f"s_add_u32 m0, s{S_LB}, {slot[p]*8192}")
            a(f"s_add_u32 s{S_T0}, s{S_KW}, {ty*1024}")
            srdi = S_WA if br == "A" else S_WB
            a(f"buffer_load_dwordx4 v{vw}, {sr(srdi)}, s{S_T0} offen lds")
            a(f"buffer_load_dwordx4 v{vw+1}, {sr(srdi)}, s{S_T0} offen offset:1024 lds")
    def dma_offsets(br, vx, vw, t):
        a(f"""
s_and_b32 s{S_T0}, s{S_WAVE}, 3
s_lshl_b32 s{S_LB}, s{S_T0}, 11
s_lshl_b32 s{S_T1}, s{S_T0}, 4
v_lshrrev_b32 v{t}, 3, v1
v_add_u32 v{t+1}, s{S_T1}, v{t}
v_and_b32 v{t+2}, 7, v1
v_lshrrev_b32 v{t+3}, 4, v1
v_xor_b32 v{t+4}, v{t+2}, v{t+3}
v_lshlrev_b32 v{t+4}, 4, v{t+4}
v_and_b32 v{t+3}, 1, v{t+3}
v_lshlrev_b32 v{t+3}, 2, v{t+3}
v_xor_b32 v{t+3}, v{t+2}, v{t+3}
v_lshlrev_b32 v{t+3}, 4, v{t+3}          ; W chunk
v_mul_u32_u24 v{vw}, 3072, v{t+1}
s_lshl_b32 s{S_T1}, s{S_HG}, 7
v_add3_u32 v{vw}, v{vw}, v{t+3}, s{S_T1}
v_add_u32 v{vw+1}, {8*3072-1024}, v{vw}
s_lshl_b32 s{S_T0}, s{S_RB}, 16
""")
        if br == "B":
            a(f"""
v_and_b32 v{t+2}, 31, v{t+1}
v_lshrrev_b32 v{t+1}, 5, v{t+1}
v_lshl_add_u32 v{t+1}, v{t+2}, 1, v{t+1}
""")
        a(f"""
v_lshl_add_u32 v{vx}, v{t+1}, 10, v{t+4}
v_add_u32 v{vx}, s{S_T0}, v{vx}
v_xor_b32 v{vx+1}, 64, v{vx}
v_add_u32 v{vx+1}, {(8 if br == 'A' else 16)*1024-1024}, v{vx+1}
s_lshl_b32 s{S_ROT}, s{S_RB if cfg.map48 else S_HG}, 1
s_add_u32 s{S_ROT}, s{S_ROT}, s{S_HG if cfg.map48 else S_RB}
s_lshr_b32 s{S_T1}, s{S_RB if cfg.map48 else S_HG}, 2
s_add_u32 s{S_ROT}, s{S_ROT}, s{S_T1}
s_and_b32 s{S_ROT}, s{S_ROT}, {cfg.rot if br == 'A' else cfg.rotb}
s_lshl_b32 s{S_ROT}, s{S_ROT}, 7
""")

    ptr = [(S_XA, 0, 2 << 20), (S_WA, 8, 3 << 19), (S_WOA, 16, 1 << 19), (S_XB, 24, 2 << 20), (S_WB, 32, 3 << 19),
           (S_WOB, 40, 1 << 19), (S_OUT, 48, 4 << 20), (S_DBG, 56, 256), (S_WS, 64, WS_SIZE)]
    def ptr_loads(lst):
        for d, off, n in ptr:
            if d in lst: a(f"s_load_dwordx2 {sr(d,2)}, s[0:1], {off}")
    def srd_words(lst):
        for d, off, n in ptr:
            if d in lst: a(f"s_mov_b32 s{d+2}, {hex(n)}\ns_mov_b32 s{d+3}, 0x00020000")
    def oa_slot():
        a(f"""
s_lshl_b32 s{S_OAO}, s{S_RB}, 6
s_lshl_b32 s{S_T1}, s{S_HG}, 2
s_add_u32 s{S_OAO}, s{S_OAO}, s{S_T1}
s_and_b32 s{S_T1}, s{S_WAVE}, 3
s_add_u32 s{S_OAO}, s{S_OAO}, s{S_T1}
s_lshl_b32 s{S_OAO}, s{S_OAO}, 10
s_add_u32 s{S_OAO}, s{S_OAO}, {WS_OA}
""")
    a("; generated by gen/gen.py\ns_cmp_ge_u32 s2, 256\ns_cbranch_scc1 L_exit")
    if cfg.stamps: a("s_memrealtime s[92:93]\ns_memtime s[94:95]")
    elif cfg.probe >= -1: a("s_memrealtime s[92:93]")
    ptr_loads([S_XA, S_WA])
    a(f"""
v_lshrrev_b32 v2, 6, v0
v_and_b32 v1, 63, v0
v_readfirstlane_b32 s{S_WAVE}, v2
""")
    if cfg.map48: a(f"""
s_bfe_u32 s{S_HG}, s2, 0x30003
s_and_b32 s{S_RB}, s2, 7
s_lshl_b32 s{S_RB}, s{S_RB}, 2
s_lshr_b32 s{S_T2}, s2, 6
s_or_b32 s{S_RB}, s{S_RB}, s{S_T2}
""")
    else: a(f"""
s_and_b32 s{S_HG}, s2, 1
s_lshl_b32 s{S_HG}, s{S_HG}, 2
s_bfe_u32 s{S_T2}, s2, 0x20003
s_or_b32 s{S_HG}, s{S_HG}, s{S_T2}
s_and_b32 s{S_RB}, s2, 6
s_lshl_b32 s{S_RB}, s{S_RB}, 2
s_lshr_b32 s{S_T2}, s2, 5
s_or_b32 s{S_RB}, s{S_RB}, s{S_T2}
""")
    a(f"""
s_bitcmp1_b32 s{S_WAVE}, 2
s_cbranch_scc1 L_loader
""")
    if cfg.cpf:
        a(f"""
s_cmp_lg_u32 s{S_WAVE}, 8
s_cbranch_scc1 L_nopf
s_getpc_b64 s[96:97]
L_pc:
s_lshr_b32 s{S_T1}, s2, 3
s_lshl_b32 s{S_T1}, s{S_T1}, 10
v_lshl_add_u32 v2, v1, 4, s{S_T1}
v_min_u32 v2, L_code_end - L_pc - 16, v2
v_mov_b32 v3, s97
v_add_co_u32 v2, vcc, s96, v2
s_nop 1
v_addc_co_u32 v3, vcc, 0, v3, vcc
global_load_dwordx4 v[164:167], v[2:3], off
L_nopf:
""")
    a(f"s_cmp_lt_u32 s{S_WAVE}, 4\ns_cbranch_scc1 L_gemm\ns_branch L_spare")

    AQ = (8, 12); NM = (16, 32); O = (48, 64); S = (80, 96); RING = 112; AM = 160
    HX, HW = 164, 166
    CW, CL, CR, CM, CP, CG = 144, 145, 146, 147, 148, 149
    S_VR = S_PP
    def kv(t): return RING + 4 * (t % 4), 128 + 8 * (t % 2), 132 + 8 * (t % 2)
    def acc_init():
        for q in range(2):
            for k in range(0, 10, 2): a(f"v_mov_b64 {vr(O[q]+k,2)}, 0")
        for k in range(0, 8, 2): a(f"v_mov_b64 {vr(S[1]+8+k,2)}, 0")
    def a_setup():
        ptr_loads([S_WB, S_DBG, S_WS]); srd_words([S_WB, S_DBG, S_WS])
        oa_slot()
        a(f"""
s_mov_b32 s{S_MASK}, 0xffff
s_mov_b32 s{S_MASK+1}, 0xffff
s_mov_b32 s{S_PASS}, 0
s_lshr_b32 s{S_T2}, s{S_WAVE}, 3
s_lshl_b32 s{S_T0}, s{S_T2}, 15
s_add_u32 s{S_OAO}, s{S_OAO}, s{S_T0}
s_lshl_b32 s{S_T0}, s{S_WAVE}, 2
s_add_u32 s{S_T0}, s{S_T0}, {L_SY}
v_mov_b32 v5, s{S_T0}
v_mov_b32 v6, 0
ds_write_b32 v5, v6
s_lshl_b32 s{S_T0}, s{S_HG}, 1
s_add_u32 s{S_T0}, s{S_T0}, s{S_T2}
s_lshl_b32 s{S_T0}, s{S_T0}, 11
s_and_b32 s{S_T1}, s{S_WAVE}, 2
s_lshl_b32 s{S_T1}, s{S_T1}, 2
s_add_u32 s{S_T0}, s{S_T0}, s{S_T1}
s_add_u32 s{S_T0}, s{S_T0}, {FL_KV}
v_lshrrev_b32 v162, 1, v1
v_lshlrev_b32 v162, 7, v162
v_and_b32 v6, 1, v1
v_lshl_add_u32 v162, v6, 2, v162
v_add_u32 v162, s{S_T0}, v162
s_and_b32 s{S_T0}, s{S_WAVE}, 3
s_lshl_b32 s{S_T1}, s{S_T0}, 1
s_add_u32 s{S_T1}, s{S_T1}, s{S_T2}
s_lshl_b32 s{S_T3}, s{S_T1}, 6
v_add_u32 v16, s{S_T3}, v1
v_lshlrev_b32 v18, 2, v16
v_lshlrev_b32 v16, 4, v16
v_add_u32 v16, {L_QX}, v16
v_add_u32 v18, {L_MX}, v18
v_xor_b32 v17, 1024, v16
v_xor_b32 v19, 256, v18
s_lshl_b32 s{S_T0}, s{S_HG}, 3
s_add_u32 s{S_T0}, s{S_T0}, s{S_T1}
s_lshl_b32 s{S_T0}, s{S_T0}, 16
v_lshlrev_b32 v163, 4, v1
v_add_u32 v3, s{S_T0}, v163
v_and_b32 v4, 15, v1
v_lshlrev_b32 v4, 4, v4
v_lshrrev_b32 v7, 5, v1
v_lshl_add_u32 v4, v7, 8, v4
; V ring; partial results go to the own ring and come from the partner's
s_sub_u32 s{S_T0}, s{S_WAVE}, 4
s_lshl_b32 s{S_VR}, s{S_T0}, 12
s_add_u32 s{S_VR}, s{S_VR}, {L_VR}
v_add_u32 v4, s{S_VR}, v4
v_add_u32 v{CW}, s{S_VR}, v163
v_lshl_add_u32 v{CL}, v1, 2, s{S_VR}
s_xor_b32 s{S_T0}, s{S_T0}, 4
s_lshl_b32 s{S_T1}, s{S_T0}, 12
s_add_u32 s{S_T1}, s{S_T1}, {L_VR}
v_add_u32 v{CR}, s{S_T1}, v163
v_lshl_add_u32 v{CM}, v1, 2, s{S_T1}
s_lshl_b32 s{S_T0}, s{S_T0}, 2
s_add_u32 s{S_T0}, s{S_T0}, {L_SY + 16}
v_mov_b32 v{CP}, s{S_T0}
s_and_b32 s{S_T0}, s{S_WAVE}, 3
s_lshl_b32 s{S_T0}, s{S_T0}, 2
s_add_u32 s{S_T0}, s{S_T0}, {L_SY}
v_mov_b32 v{CG}, s{S_T0}
v_mov_b32 v2, 0xdddd
v_and_b32 v6, 27, v1
v_cmp_eq_u32 vcc, 16, v6
v_mov_b32 v6, 0x3f803f80
s_nop 0
v_cndmask_b32 v6, 0, v6, vcc
v_mov_b32 v7, v6
""")
        for t in range(2):
            for k in range(0, 8, 2): a(f"v_mov_b64 {vr(kv(t)[1]+k,2)}, v[6:7]")
        acc_init()
        a("s_waitcnt lgkmcnt(0)")
    def ld(t):
        off = (t % 2) * 2048; d = (t % 4) * 1024 - off - 1024
        a(f"s_add_u32 m0, s{S_VR}, {d}" if d >= 0 else f"s_sub_u32 m0, s{S_VR}, {-d}")
        a(f"buffer_load_dwordx4 {vr(kv(t)[0],4)}, v3, {sr(S_WS)}, s{S_OFF} offen offset:{off} sc1")
        a(f"buffer_load_dwordx4 v3, {sr(S_WS)}, s{S_OFF} offen offset:{off+1024} sc1 lds")
        if t % 2 == 1: a(f"s_add_u32 s{S_OFF}, s{S_OFF}, 4096")
    def vrd(t):
        a(f"s_mov_b64 exec, {sr(S_MASK,2)}")
        a(f"ds_read_b128 {vr(kv(t)[1],4)}, v4 offset:{(t%4)*1024}\nds_read_b128 {vr(kv(t)[2],4)}, v4 offset:{(t%4)*1024+512}")
        a("s_mov_b64 exec, -1")

    a("L_loader:")
    dma_offsets("A", HX, HW, 10)
    srd_words([S_XA, S_WA])
    a("s_waitcnt lgkmcnt(0)")
    for k, op in enumerate(prog):
        if op[0] == "issue": issue(op[1], HX, HW)
        elif op[0] == "start":
            stamp(0)
            a("s_call_b64 s[98:99], L_asetup")
        elif op[0] == "wait":
            if k + 1 < len(prog) and prog[k+1][0] != "wait":
                a(f"s_waitcnt vmcnt({2 * (op[2] - op[1] - 1)})")
        else:
            si = op[1]
            if si in (0, 7, 8, 11): stamp({0: 1, 7: 3, 8: 4, 11: 5}[si])
            a(f"s_barrier   ; stage {stages[si]['n']} landed")
    a(f"s_mov_b32 s{S_PIT}, {cfg.prio_iter}\ns_setprio 2")
    a("L_handover:\ns_barrier")
    stamp(2)
    a(f"""
ds_read_b128 {vr(AQ[0],4)}, v16
ds_read_b128 {vr(AQ[1],4)}, v17
ds_read_b32 v{AM}, v18
ds_read_b32 v{AM+1}, v19
""")
    poll(162, 32, S_WS, 6)
    stamp(7)
    a(f"v_mov_b32 v6, 1\nL_a_start:\ns_mov_b32 s{S_OFF}, 0\ns_mov_b32 s{S_IT}, 0")
    for t in range(3): ld(t)
    a("s_waitcnt lgkmcnt(0)\nds_write_b32 v5, v6")
    for q in range(2):
        a(f"v_mov_b32 v{NM[q]}, v{AM+q}\nv_mov_b32 v{NM[q]+1}, v{AM+q}")
        for k in range(2, 16, 2): a(f"v_mov_b64 {vr(NM[q]+k,2)}, {vr(NM[q],2)}")
    a("s_waitcnt vmcnt(4)")
    a(mfma(S[0], kv(0)[0], AQ[0], NM[0]))
    vrd(0)
    a("s_nop 7")
    stamp(8)
    def body(last):
        for u in range(8):
            t, q = u // 2, u % 2
            c = S[u % 2]; o = S[(u + 1) % 2]
            tp, qp = (u - 1) // 2, (u - 1) % 2
            tn, qn = (u + 1) // 2, (u + 1) % 2
            e = lambda i: a(f"v_exp_f32 v{c+i}, v{c+i}")
            e(0); e(1)
            a(f"v_smfmac_f32_32x32x32_bf16 {vr(O[qp],16)}, {vr(kv(tp)[2],4)}, {vr(o+8,8)}, v2")
            if q == 0:
                if not last or t == 0: ld(t + 3)
                a("s_waitcnt lgkmcnt(0)")
            e(2); e(3)
            if q == 1 and not (last and t == 3):
                a(f"s_waitcnt vmcnt({4 - 2*t if last else 4})"); vrd(t + 1)
            if last and u == 7: a(f"ds_read_b32 v7, v{CG}")
            e(4)
            if not (last and u == 7): a(mfma(o, kv(tn)[0], AQ[qn], NM[qn]))
            for i in range(5, 11): e(i)
            a(f"v_smfmac_f32_32x32x32_bf16 {vr(O[q],16)}, {vr(kv(t)[1],4)}, {vr(c,8)}, v2")
            for i in range(11, 16): e(i)
        if cfg.tailst == 4:
            a("s_memtime s[90:91]\n" + "".join(f"s_mov_b32 s{S_STAMP+k}, s{S_STAMP+k+1}\n" for k in range(7)) + f"s_waitcnt lgkmcnt(0)\ns_mov_b32 s{S_STAMP+7}, s90")
    a(".p2align 3\nL_loop:")
    body(False)
    thr = f32(2.0**40) if not cfg.force_fallback else f32(2.0**-3)
    assert cfg.prio_iter <= 7
    a(f"""
s_add_u32 s{S_IT}, s{S_IT}, 1
s_cmp_lg_u32 s{S_IT}, s{S_PIT}
s_cbranch_scc1 L_keep
s_setprio 0
L_keep:
s_cmp_lt_u32 s{S_IT}, 7
s_cbranch_scc1 L_loop
""")
    body(True)
    a(f"""
s_mov_b32 s{S_T2}, {thr}
s_waitcnt lgkmcnt(0)
v_smfmac_f32_32x32x32_bf16 {vr(O[1],16)}, {vr(kv(3)[2],4)}, {vr(S[1]+8,8)}, v2
""")
    stamp(9)
    lds_wait(CG, 7, G_BDONE, preloaded=True)
    a(f"""
v_max3_f32 v6, |v{O[0]}|, |v{O[0]+1}|, |v{O[0]+2}|
v_max3_f32 v6, v6, |v{O[0]+3}|, |v{O[0]+4}|
v_max3_f32 v6, v6, |v{O[0]+5}|, |v{O[0]+6}|
v_max_f32 v6, v6, |v{O[0]+7}|
s_setprio 3
s_nop 4
ds_write_b128 v{CW}, {vr(O[1],4)}
ds_write_b128 v{CW}, {vr(O[1]+4,4)} offset:1024
ds_write_b32 v{CL}, v{O[1]+8} offset:2048
v_max3_f32 v6, v6, |v{O[1]}|, |v{O[1]+1}|
v_max3_f32 v6, v6, |v{O[1]+2}|, |v{O[1]+3}|
v_max3_f32 v6, v6, |v{O[1]+4}|, |v{O[1]+5}|
v_max3_f32 v6, v6, |v{O[1]+6}|, |v{O[1]+7}|
v_mul_f32 v6, {f32(2.0**-80)}, v6
v_max3_f32 v6, v6, v{O[0]+8}, v{O[1]+8}
v_cmp_nlt_f32 vcc, v6, s{S_T2}
; state: 2 = partial written, 3 = unsafe, 4 = true max written, 6 = second pass written
s_lshl_b32 s{S_T3}, s{S_PASS}, 2
s_add_u32 s{S_T3}, s{S_T3}, 2
s_cmp_lg_u64 vcc, 0
s_cselect_b32 s{S_T1}, 1, 0
s_andn2_b32 s{S_T1}, s{S_T1}, s{S_PASS}
s_add_u32 s{S_T0}, s{S_T3}, s{S_T1}
v_mov_b32 v6, s{S_T0}
s_waitcnt lgkmcnt(0)
ds_write_b32 v5, v6
s_cmp_lg_u32 s{S_T1}, 0
s_cbranch_scc1 L_fallback
""")
    lds_wait(CP, 21, f"s{S_T3}", sleep=cfg.csleep)
    a(f"""
ds_read_b128 {vr(24,4)}, v{CR}
ds_read_b128 {vr(28,4)}, v{CR} offset:1024
ds_read_b32 v32, v{CM} offset:2048
v_cmp_ne_u32 vcc, s{S_T3}, v21
s_cbranch_vccnz L_fallback
L_final:
s_waitcnt lgkmcnt(0)
""")
    stamp(10)
    a(f"v_add_f32 v32, v32, v{O[0]+8}\nv_rcp_f32 v32, v32")
    for k in range(8): a(f"v_add_f32 v{24+k}, v{24+k}, v{O[0]+k}")
    for k in range(8): a(f"v_mul_f32 v{24+k}, v{24+k}, v32")
    for k in range(4): a(f"v_cvt_pk_bf16_f32 v{36+k}, v{24+2*k}, v{24+2*k+1}")
    for k in range(4): a(f"v_min_u32 v{36+k}, -2, v{36+k}")
    a(f"buffer_store_dwordx4 {vr(36,4)}, v163, {sr(S_WS)}, s{S_OAO} offen sc1")
    stamp(11)
    a("s_barrier")
    if cfg.ackwait: a("s_waitcnt vmcnt(0)")
    stamp(12)
    a("s_barrier\ns_branch L_end")

    a(f"""
L_fallback:
s_cmp_lg_u32 s{S_PASS}, 0
s_cbranch_scc1 L_final
s_mov_b32 s{S_PASS}, 1
s_mov_b32 s{S_OFF}, 0
v_mov_b32 v{AM}, 0xff800000
v_mov_b32 v{AM+1}, 0xff800000
L_fb_loop:
buffer_load_dwordx4 {vr(RING,4)}, v3, {sr(S_WS)}, s{S_OFF} offen sc1
s_waitcnt vmcnt(0)
{mfma(S[0], RING, AQ[0], None)}
{mfma(S[1], RING, AQ[1], None)}
s_nop 15
""")
    for q in range(2):
        for i in range(0, 16, 2): a(f"v_max3_f32 v{AM+q}, v{AM+q}, v{S[q]+i}, v{S[q]+i+1}")
    a(f"""
s_add_u32 s{S_OFF}, s{S_OFF}, 2048
s_cmp_lt_u32 s{S_OFF}, 65536
s_cbranch_scc1 L_fb_loop
v_mov_b32 v6, v{AM}
v_mov_b32 v7, v{AM+1}
s_nop 1
v_permlane32_swap_b32 v{AM}, v6
v_permlane32_swap_b32 v{AM+1}, v7
s_nop 1
v_max_f32 v{AM}, v{AM}, v6
v_max_f32 v{AM+1}, v{AM+1}, v7
s_sub_u32 s{S_T0}, s{S_WAVE}, 4
s_lshl_b32 s{S_T1}, s{S_T0}, 9
s_add_u32 s{S_T1}, s{S_T1}, {L_FX}
v_lshl_add_u32 v16, v1, 2, s{S_T1}
s_xor_b32 s{S_T0}, s{S_T0}, 4
s_lshl_b32 s{S_T1}, s{S_T0}, 9
s_add_u32 s{S_T1}, s{S_T1}, {L_FX}
v_lshl_add_u32 v17, v1, 2, s{S_T1}
ds_write_b32 v16, v{AM}
ds_write_b32 v16, v{AM+1} offset:256
v_mov_b32 v6, 4
s_waitcnt lgkmcnt(0)
ds_write_b32 v5, v6
""")
    lds_wait(CP, 21, 4)
    a(f"""
ds_read_b32 v20, v17 offset:256
ds_read_b32 v21, v17
s_waitcnt lgkmcnt(0)
v_max_f32 v{AM}, v{AM}, v20
v_max_f32 v{AM+1}, v{AM+1}, v21
v_sub_f32 v{AM}, 0, v{AM}
v_sub_f32 v{AM+1}, 0, v{AM+1}
""")
    acc_init()
    a("s_branch L_a_start")

    a("L_asetup:")
    a_setup()
    a("s_setpc_b64 s[98:99]")
    lskip = a.lab()
    a(f"""
L_spare:
s_call_b64 s[98:99], L_asetup
s_sub_u32 s{S_T0}, s{S_WAVE}, 8
s_lshl_b32 s{S_T0}, s{S_T0}, 4
s_or_b32 s{S_T0}, s{S_T0}, s2
s_cmp_ge_u32 s{S_T0}, 12
s_cbranch_scc1 {lskip}
v_lshlrev_b32 v20, 7, v1
s_lshl_b32 s{S_T1}, s2, 13
s_add_u32 s{S_T1}, s{S_T1}, {WS_FL}
s_lshl_b32 s{S_T0}, s2, 2
buffer_store_dwordx4 {vr(O[0],4)}, v20, {sr(S_WS)}, s{S_T1} offen sc1
v_mov_b32 v21, 1
s_waitcnt vmcnt(0)
s_mov_b64 exec, 1
buffer_store_dword v21, v163, {sr(S_DBG)}, s{S_T0} offen sc1
s_mov_b64 exec, -1
{lskip}:
s_mov_b32 s{S_PIT}, 8
s_setprio 1
""")
    for st_ in stages: a("s_barrier")
    a("s_branch L_handover")

    LX, LW = 152, 154
    VS, VV, VA, VC = 158, 159, 160, 161
    NEGM, QXA, WO = 162, 164, 166
    a("L_gemm:\ns_setprio 2")
    rest = [S_WOA, S_XB, S_WB, S_WOB, S_OUT, S_DBG, S_WS]
    ptr_loads(rest); srd_words(rest)
    oa_slot()
    dma_offsets("B", LX, LW, 16)
    a(f"""
s_cmp_eq_u32 s{S_RB}, 0
s_cselect_b32 s{S_HM}, 15, 0
s_and_b32 s{S_T0}, s2, 7
s_lshl_b32 s{S_RBO}, s{S_T0}, 2
s_lshr_b32 s{S_T2}, s2, 6
s_or_b32 s{S_RBO}, s{S_RBO}, s{S_T2}
s_bfe_u32 s{S_NB}, s2, 0x30003
s_lshl_b32 s{S_T0}, s{S_NB}, 7
v_lshl_add_u32 v{WO}, v16, 10, v19
v_add_u32 v{WO}, s{S_T0}, v{WO}
v_add_u32 v{WO+1}, 7168, v{WO}
s_lshl_b32 s{S_PIT}, s{S_RBO}, 1
s_add_u32 s{S_PIT}, s{S_PIT}, s{S_NB}
s_and_b32 s{S_PIT}, s{S_PIT}, 7
s_lshl_b32 s{S_PP}, s{S_PIT}, 16
s_lshl_b32 s{S_T0}, s{S_LB}, 3
s_add_u32 s{S_PP}, s{S_PP}, s{S_T0}
s_mov_b32 s{S_C}, {f32(0.25 * math.log2(math.e))}
s_lshl_b32 s{S_T0}, s{S_WAVE}, 2
s_add_u32 s{S_T0}, s{S_T0}, {L_SY}
v_mov_b32 v{VS}, s{S_T0}
s_and_b32 s{S_T0}, s{S_WAVE}, 1
s_lshr_b32 s{S_T1}, s{S_WAVE}, 1
v_and_b32 v14, 31, v1
v_lshrrev_b32 v15, 5, v1             ; h
v_bfe_u32 v16, v1, 1, 3
v_xor_b32 v16, v16, v15
v_lshlrev_b32 v16, 4, v16
v_lshl_add_u32 v2, v14, 7, v16
s_lshl_b32 s{S_T2}, s{S_T0}, 12
v_add_u32 v2, s{S_T2}, v2
v_xor_b32 v3, 32, v2
v_xor_b32 v4, 64, v2
v_xor_b32 v5, 96, v2
v_bfe_u32 v16, v1, 2, 2              ; r4
v_lshl_add_u32 v17, v15, 3, v16      ; 8h + r4
v_and_b32 v18, 3, v1
v_lshlrev_b32 v{VA}, 2, v18
v_add_u32 v{VA}, {L_SY}, v{VA}
v_lshlrev_b32 v18, 3, v18            ; 8*c4
v_bfe_u32 v19, v1, 4, 1
v_lshl_add_u32 v18, v19, 5, v18      ; + 32*nsub
v_bfe_u32 v19, v1, 3, 1              ; (r4>>1)&1
v_xor_b32 v19, s{S_T1}, v19
v_lshl_add_u32 v18, v19, 6, v18
v_lshl_add_u32 v10, v17, 7, v18
v_add_u32 v10, {L_W}, v10
v_add_u32 v11, 0x10000, v10
s_lshl_b32 s{S_T2}, s{S_T1}, 2
s_add_u32 s{S_T2}, s{S_T2}, s{S_T0}
s_lshl_b32 s{S_T2}, s{S_T2}, 6
v_add_u32 v{QXA}, s{S_T2}, v1
v_lshlrev_b32 v{QXA+1}, 2, v{QXA}
v_lshlrev_b32 v{QXA}, 4, v{QXA}
v_add_u32 v{QXA}, {L_QX}, v{QXA}
v_add_u32 v{QXA+1}, {L_MX}, v{QXA+1}
s_lshl_b32 s{S_T2}, s{S_HG}, 1
s_add_u32 s{S_T2}, s{S_T2}, s{S_T1}
s_lshl_b32 s{S_OBO}, s{S_T2}, 11
s_lshl_b32 s{S_T2}, s{S_T2}, 18
s_lshl_b32 s{S_T3}, s{S_RB}, 1
s_add_u32 s{S_T3}, s{S_T3}, s{S_T0}
s_lshl_b32 s{S_T3}, s{S_T3}, 11
s_add_u32 s{S_T2}, s{S_T2}, s{S_T3}
s_lshl_b32 s{S_T3}, s{S_T3}, 4
s_add_u32 s{S_OBO}, s{S_OBO}, s{S_T3}
s_add_u32 s{S_OBO}, s{S_OBO}, {WS_OB}
s_lshl_b32 s{S_FL}, s{S_HG}, 5
s_add_u32 s{S_FL}, s{S_FL}, s{S_RB}
s_lshl_b32 s{S_HLO}, s{S_FL}, 2
s_add_u32 s{S_HLO}, s{S_HLO}, s{S_WAVE}
s_lshl_b32 s{S_HLO}, s{S_HLO}, 10
s_add_u32 s{S_HLO}, s{S_HLO}, {WS_HL}
s_lshl_b32 s{S_FL}, s{S_FL}, 5
s_add_u32 s{S_FL}, s{S_FL}, s{S_WAVE}
s_lshl_b32 s{S_FL}, s{S_FL}, 2
s_add_u32 s{S_FL}, s{S_FL}, {FL_KV}
v_and_b32 v16, 0x33, v1
v_bfe_u32 v17, v1, 2, 1
v_lshl_or_b32 v16, v17, 3, v16
v_bfe_u32 v17, v1, 3, 1
v_lshl_or_b32 v16, v17, 2, v16
v_lshlrev_b32 v12, 4, v16
v_add_u32 v12, s{S_T2}, v12
v_and_b32 v16, 15, v1
v_lshlrev_b32 v16, 4, v16
v_lshl_add_u32 v16, v15, 8, v16
v_bfe_u32 v17, v1, 4, 1
v_lshl_add_u32 v13, v17, 17, v16
v_add_u32 v13, s{S_T2}, v13
v_lshlrev_b32 v0, 2, v1
v_bfe_u32 v16, v1, 2, 2              ; r4
v_lshl_add_u32 v17, v15, 2, v16      ; 4h + r4
v_and_b32 v18, 1, v1
v_lshlrev_b32 v18, 5, v18            ; 32B * (c4&1)
v_bfe_u32 v19, v1, 4, 1
v_lshl_add_u32 v18, v19, 4, v18      ; + 16B * g'
v_bfe_u32 v19, v1, 1, 1
v_lshl_add_u32 v18, v19, 3, v18      ; + 8B * (c4>>1)
v_bfe_u32 v19, v1, 3, 1
v_xor_b32 v19, s{S_T1}, v19
v_lshl_add_u32 v18, v19, 6, v18
v_lshl_add_u32 v6, v17, 7, v18
s_lshl_b32 s{S_T2}, s{S_T1}, 15
v_add_u32 v6, s{S_T2}, v6
s_lshl_b32 s{S_OUTO}, s{S_RBO}, 17
s_lshl_b32 s{S_T2}, s{S_NB}, 7
s_add_u32 s{S_OUTO}, s{S_OUTO}, s{S_T2}
s_lshl_b32 s{S_T2}, s{S_T1}, 6
s_add_u32 s{S_OUTO}, s{S_OUTO}, s{S_T2}
v_lshl_add_u32 v7, v14, 1, s{S_T0}
v_lshlrev_b32 v7, 11, v7
v_lshl_add_u32 v7, v15, 5, v7
v_add_u32 v7, 1024, v7
s_lshl_b32 s{S_T2}, s{S_T0}, 5
v_add_u32 v9, s{S_T2}, v14
v_lshlrev_b32 v9, 11, v9
v_lshl_add_u32 v9, v15, 5, v9
s_lshl_b32 s{S_T2}, s{S_RBO}, 16
s_lshl_b32 s{S_T0}, s{S_T0}, 15
s_add_u32 s{S_T2}, s{S_T2}, s{S_T0}
s_add_u32 s{S_T2}, s{S_T2}, {WS_OB}
s_lshl_b32 s{S_T1}, s{S_T1}, 2
s_add_u32 s{S_T1}, s{S_T1}, s{S_PIT}
""")
    for g in range(4):
        a(f"s_add_u32 s{S_T0}, s{S_T1}, {g}\ns_and_b32 s{S_T0}, s{S_T0}, 7\ns_lshl_b32 s{S_T0}, s{S_T0}, 12\ns_add_u32 s{S_G[g]}, s{S_T2}, s{S_T0}")
    a(f"""
s_lshl_b32 s{S_T0}, s{S_RBO}, 7
s_add_u32 s{S_T0}, s{S_T0}, {FL_OB}
v_lshrrev_b32 v8, 2, v1
v_add_u32 v8, s{S_T1}, v8
v_and_b32 v8, 7, v8
v_lshlrev_b32 v8, 12, v8
v_and_b32 v16, 3, v1
v_lshl_add_u32 v8, v16, 2, v8
v_add_u32 v8, s{S_T0}, v8
v_and_b32 v156, 7, v1
v_lshl_add_u32 v156, v15, 3, v156
v_lshlrev_b32 v156, 4, v156
v_mov_b32 v16, 0
ds_write_b32 v{VS}, v16
s_waitcnt lgkmcnt(0)
""")
    stamp(0)
    def wread(dst, p, ks):
        sl = slot[p] - 3; base = 10 if sl < 8 else 11; off = (sl % 8) * 8192 + ks * 2048
        return [(f"ds_read_b64_tr_b16 {vr(dst,2)}, v{base} offset:{off}", dst), (f"ds_read_b64_tr_b16 {vr(dst+2,2)}, v{base} offset:{off+512}", dst+2)]
    def xread(dst, p, ks): return [(f"ds_read_b128 {vr(dst,4)}, v{2+ks} offset:{slot[p]*8192}", dst)]
    ACK, ACV, ACQ = 16, 32, 48
    BQ, BK, BV = 16, 32, 48
    KBF, VBF, QBF = 120, 128, 128
    MP, MD, MA = 120, 124, 140
    M = []; R = []
    def addm(d, x, y, first, tag): M.append(dict(txt=mfma(d, x, y, None if first else d), src=(x, y), tag=tag))
    def addr(lst, st, floor=-1):
        for txt, dst in lst:
            prev = [i for i, m in enumerate(M) if any(s <= dst < s + 4 for s in m["src"])]
            R.append(dict(txt=txt, stage=st, need=len(M), after=max(prev + [floor])))
    for g in range(32):
        s, ks = g // 4, g % 4; b = 64 + 12 * (g % 4)
        addr(xread(b, ("x", "A", s), ks) + wread(b + 4, ("w", "A", 1, s), ks), s)
        addm(ACK, b + 4, b, g == 0, ("K", g))
        addr(wread(b + 8, ("w", "A", 2, s), ks), s)
        addm(ACV, b, b + 8, g == 0, ("V", g))
    fl = len(M) - 1
    for g in range(32):
        s, ks = g // 4, g % 4; b = 64 + 8 * (g % 7)
        addr(xread(b, ("x", "A", s), ks) + wread(b + 4, ("w", "A", 0, s), ks), 8 + s // 2, fl)
        addm(ACQ, b + 4, b, g == 0, ("Q", g))
    fl = len(M) - 1
    for g in range(32):
        s, ks = g // 4, g % 4; b = 64 + 16 * (g % 3); st = 12 + s
        x, wq, wk, wv = b, b+4, b+8, b+12
        addr(xread(x, ("x", "B", s), ks) + wread(wk, ("w", "B", 1, s), ks), st, fl)
        addm(BK, wk, x, g == 0, ("B", 3*g))
        addr(wread(wv, ("w", "B", 2, s), ks), st, fl)
        addm(BV, x, wv, g == 0, ("B", 3*g+1))
        addr(wread(wq, ("w", "B", 0, s), ks), st, fl)
        addm(BQ, wq, x, g == 0, ("B", 3*g+2))

    st = dict(ri=0, issued=[], done=0, bar=-1, chk=None)
    vq = []
    def wait_upto(n):
        if st["done"] < n:
            k = min(15, len(st["issued"]) - n); a(f"s_waitcnt lgkmcnt({k})"); st["done"] = len(st["issued"]) - k
    def lds_op(t, stage):
        wait_upto(len(st["issued"]) - 14); a(t); st["issued"].append(stage)
    def retire(upto):
        idx = [i for i, x in enumerate(st["issued"]) if x <= upto]
        if idx: wait_upto(max(idx) + 1)
    def b_issue(p): issue(p, LX, LW); vq.extend([p[-1]] * 2)
    def flag(off): a(f"s_add_u32 s{S_T0}, s{S_FL}, {off - FL_KV}\ns_mov_b64 exec, 1\nbuffer_store_dword v12, v0, {sr(S_WS)}, s{S_T0} offen sc1\ns_mov_b64 exec, -1")
    def arrive(s):
        retire(12 + s - 2)
        a(f"s_waitcnt vmcnt({len(vq) - 1 - max(i for i, x in enumerate(vq) if x == s)})")
        lds_op(f"ds_write_b32 v{VS}, v{VV}", 99)
    def barrier(s):
        if s < 12:
            retire(s - 2)
            a(f"s_barrier   ; {stages[s]['n']}")
            if s == 0: stamp(1)
        else:
            if st["chk"] is not None: wait_upto(st["chk"])
            if cfg.vprio != cfg.gprio: a(f"s_setprio {cfg.vprio}")
            lds_wait(VA, VC, s - 12 + 1, preloaded=st["chk"] is not None)
            a(f"v_mov_b32 v{VV}, {s - 12 + 2}")
            if cfg.vprio != cfg.gprio: a(f"s_setprio {cfg.gprio}")
            if st["chk"] is None: st["done"] = len(st["issued"])
            st["chk"] = None
            if cfg.tailst == 2: a(f"s_memtime s[{4+2*(s-12)}:{5+2*(s-12)}]\ns_waitcnt lgkmcnt(0)")
        st["bar"] = s
    pos = {}
    def issue_reads(i, lim):
        while st["ri"] < len(R) and R[st["ri"]]["need"] <= lim and R[st["ri"]]["after"] <= i:
            r = R[st["ri"]]
            if r["stage"] > st["bar"]: barrier(r["stage"])
            lds_op(r["txt"], r["stage"]); pos[st["ri"]] = len(st["issued"]); st["ri"] += 1
    def pace(): a(f"s_waitcnt vmcnt({2 * (cfg.bdepth - 1)})")
    def b_first():
        for p in bst[0]:
            if p not in pre: b_issue(p); pace()
        b_issue(bst[1][0]); pace()
        for p in bst[1][1:]: b_issue(p)
    def wo_issue(br, i):
        a(f"""
s_add_u32 m0, s{S_LB}, {(L_WOB if br == 'B' else L_WOA) + i*8192}
s_add_u32 s{S_T0}, s{S_PP}, {i*65536}
s_and_b32 s{S_T0}, s{S_T0}, 0x7ffff
buffer_load_dwordx4 v{WO}, {sr(S_WOB if br == 'B' else S_WOA)}, s{S_T0} offen lds
buffer_load_dwordx4 v{WO+1}, {sr(S_WOB if br == 'B' else S_WOA)}, s{S_T0} offen offset:1024 lds
""")
        vq.extend([99] * 2)
    def q_end():
        S0, S1 = 16, 32
        kstate["k"] = None
        a("s_nop 11")
        for i in range(16): a(f"v_mul_f32 v{ACQ+i}, s{S_C}, v{ACQ+i}")
        for i in range(8): a(f"v_cvt_pk_bf16_f32 v{QBF+i}, v{ACQ+2*i}, v{ACQ+2*i+1}")
        a(f"""
ds_write_b128 v{QXA}, {vr(QBF,4)}
{mfma(S0, KBF, QBF, None)}
{mfma(S1, KBF+4, QBF+4, None)}
ds_write_b128 v{QXA}, {vr(QBF+4,4)} offset:2048
s_nop 9
""")
        for e, Sx in enumerate((S0, S1)):
            m = NEGM + e
            a(f"v_max3_f32 v{m}, v{Sx}, v{Sx+1}, v{Sx+2}")
            for i in range(3, 15, 2): a(f"v_max3_f32 v{m}, v{m}, v{Sx+i}, v{Sx+i+1}")
            a(f"v_max_f32 v{m}, v{m}, v{Sx+15}\nv_mov_b32 v{Sx}, v{m}")
        a("s_nop 1")
        for e, Sx in enumerate((S0, S1)): a(f"v_permlane32_swap_b32 v{NEGM+e}, v{Sx}")
        a("s_nop 1")
        for e, Sx in enumerate((S0, S1)): a(f"v_max_f32 v{NEGM+e}, v{NEGM+e}, v{Sx}\nv_sub_f32 v{NEGM+e}, 0, v{NEGM+e}")
        a(f"ds_write_b32 v{QXA+1}, v{NEGM}\nds_write_b32 v{QXA+1}, v{NEGM+1} offset:512\ns_waitcnt lgkmcnt(0)\ns_barrier   ; hand-over")
        st["done"] = len(st["issued"])
        a(f"s_setprio 0\nv_mov_b32 v{VV}, 1")
        a(f"""
v_mov_b32 v162, 0x1fe
v_mov_b32 v163, 0
v_lshlrev_b64 v[162:163], v14, v[162:163]
v_lshlrev_b32 v164, 2, v15
v_lshrrev_b64 v[162:163], v164, v[162:163]
v_alignbit_b32 v163, v163, v162, 8
v_not_b32 v163, v163
v_not_b32 v162, v162
v_or_b32 v162, s{S_HM}, v162
v_mov_b32 v164, 0x07070303
v_lshlrev_b32 v13, 4, v1
v_lshlrev_b32 v157, 3, v1
v_mov_b64 v[112:113], -1
v_mov_b64 v[114:115], -1
s_add_u32 s{S_T0}, s{S_FL}, {FL_MK - FL_KV - 128}
v_mov_b32 v150, s{S_T0}
""")
        for aa in range(4):
            for b in range(4): a(f"v_bfe_i32 v{MD+4*aa+b}, v163, {8*aa+b}, 1\nv_lshlrev_b32 v{MD+4*aa+b}, 23, v{MD+4*aa+b}")
        for b in range(4): a(f"v_bfe_i32 v{MP+b}, v162, {b}, 1\nv_lshlrev_b32 v{MP+b}, 23, v{MP+b}")
        for k in range(8): a(f"v_perm_b32 v{MA+k}, v{MD+2*k+1}, v{MD+2*k}, v164")
        for k in range(2): a(f"v_perm_b32 v{MA+8+k}, v{MP+2*k+1}, v{MP+2*k}, v164")
        lds_wait(VA, VC, 1, off=16); lds_wait(VA, VC, 1, off=32)
        b_first()
        a(f"s_setprio {cfg.gprio}")
        arrive(0)
    issue_reads(-1, cfg.la - 1)
    for i, m in enumerate(M):
        needed = [k for k, r in enumerate(R) if r["need"] == i]
        if needed:
            assert max(needed) < st["ri"], (i, m)
            wait_upto(pos[max(needed)])
        a(m["txt"])
        if m["tag"] == ("V", 31):
            stamp(2)
            a("s_nop 9")
            a(f"s_mov_b32 s{S_T2}, 0x20000")
            for k in range(8): a(f"v_cvt_pk_bf16_f32 v{KBF+k}, v{ACK+2*k}, v{ACK+2*k+1}")
            a(f"buffer_store_dwordx4 {vr(KBF,4)}, v12, {sr(S_WS)}, 0 offen sc1")
            a(f"buffer_store_dwordx4 {vr(KBF+4,4)}, v12, {sr(S_WS)}, s{S_T2} offen sc1")
            for k in range(8): a(f"v_cvt_pk_bf16_f32 v{VBF+k}, v{ACV+2*k}, v{ACV+2*k+1}")
            a(f"buffer_store_dwordx4 {vr(VBF,4)}, v13, {sr(S_WS)}, 0 offen offset:1024 sc1")
            a(f"buffer_store_dwordx4 {vr(VBF+4,4)}, v13, {sr(S_WS)}, 0 offen offset:1536 sc1")
            a(f"buffer_load_dword v12, v0, {sr(S_DBG)}, 0 offen sc1")
        if m["tag"] == ("Q", cfg.pubg):
            poll(0, 12, S_DBG, 12, preloaded=True)
            a(f"v_mov_b32 v12, 1\ns_mov_b64 exec, 1\nbuffer_store_dword v12, v0, {sr(S_WS)}, s{S_FL} offen sc1\ns_mov_b64 exec, -1")
            stamp(4)
        if m["tag"] == ("Q", 31):
            stamp(3)
            q_end()
        if m["tag"][0] == "B":
            s, p_ = m["tag"][1] // 12, m["tag"][1] % 12
            if s == cfg.marks and p_ == 8:
                a(f"s_add_u32 s{S_T1}, s{S_OAO}, 32768")
                for so in (S_HLO, S_OAO, S_T1): a(f"buffer_store_dwordx4 v[112:115], v13, {sr(S_WS)}, s{so} offen sc1")
            if s == cfg.marks + 1 and p_ == 7: a("s_waitcnt vmcnt(0)"); flag(FL_MK)
            if s == 7 and p_ == 0: a(f"buffer_load_dword v151, v150, {sr(S_WS)}, 0 offen sc1")
            if s < 7 and p_ == 7: arrive(s + 1)
            if s < 7 and p_ == 8: lds_op(f"ds_read_b32 v{VC}, v{VA}", 99); st["chk"] = len(st["issued"])
            if p_ in (2, 5, 8):
                if s < 6: b_issue(bst[s + 2][1 + p_ // 3])
                else: wo_issue(*[[("B", 4), ("A", 2), ("B", 6)], [("B", 3), ("A", 1), ("B", 5)]][s - 6][p_ // 3])
            if s < 6 and p_ == 11:
                assert st["bar"] == 12 + s + 1
                b_issue(bst[s + 2][0])
        la = cfg.lab if (m["tag"][0] == "B" or m["tag"] == ("Q", 31)) else (5 if m["tag"][0] == "Q" or m["tag"] == ("V", 31) else cfg.la)
        issue_reads(i, i + la)
    assert st["ri"] == len(R) and st["bar"] == 19

    QB, KB, KHB, VB, VHB = 80, 88, 96, 104, 112
    SD, SP, OO = (16, 32), (48, 64), (16, 32)
    PD, PP = (48, 64), (56, 72)
    Z = ([2, 3, 4, 5, 10, 11], [116, 117, 118, 119, 150, 151])
    def progress(v, wait="lgkmcnt(0)"): a(f"v_mov_b32 v{VV}, {v}\ns_waitcnt {wait}\nds_write_b32 v{VS}, v{VV}")
    def wo_paced(lst):
        for sl in lst: wo_issue(*sl); a(f"s_waitcnt vmcnt({2 * (cfg.wodepth - 1)})")
    a(f"s_setprio {cfg.vprio}")
    progress(G_BDONE)
    a(f"""
s_nop 5
""")
    for k in range(8): a(f"v_cvt_pk_bf16_f32 v{KB+k}, v{BK+2*k}, v{BK+2*k+1}")
    for k in range(8): a(f"v_min_u32 v{KB+k}, -2, v{KB+k}")
    a(f"""
s_mov_b32 exec_lo, 0xff000000
s_mov_b32 exec_hi, 0xff000000
buffer_store_dwordx4 {vr(KB,4)}, v156, {sr(S_WS)}, s{S_HLO} offen sc1
buffer_store_dwordx4 {vr(KB+4,4)}, v156, {sr(S_WS)}, s{S_HLO} offen offset:256 sc1
s_mov_b64 exec, -1
""")
    for k in range(8): a(f"v_cvt_pk_bf16_f32 v{VB+k}, v{BV+2*k}, v{BV+2*k+1}")
    a(f"""
v_min_u32 v{VB+6}, -2, v{VB+6}
v_min_u32 v{VB+7}, -2, v{VB+7}
buffer_store_dwordx2 {vr(VB+6,2)}, v157, {sr(S_WS)}, s{S_HLO} offen offset:512 sc1
""")
    for k in range(8): a(f"v_cvt_pk_bf16_f32 v{QB+k}, v{BQ+2*k}, v{BQ+2*k+1}")
    stamp(5)
    lds_wait(VA, VC, G_BDONE)
    a(mfma(SD[0], KB, QB, MD))
    a(mfma(SD[1], KB+4, QB+4, MD))
    wo_paced([("B", 0), ("B", 1), ("B", 2)][:cfg.hw])
    for e in range(2):
        for b in range(4): a(f"v_max3_f32 v{Z[e][b]}, v{SD[e]+b}, v{SD[e]+4+b}, v{SD[e]+8+b}")
    lh, lo_ = a.lab(), a.lab()
    a(f"""
s_sub_u32 s{S_HLO}, s{S_HLO}, 4096
s_cmp_eq_u32 s{S_RB}, 0
s_cselect_b32 s{S_HLO}, 0x80000000, s{S_HLO}
s_cbranch_scc1 {lh}a
""")
    poll(150, 1, S_WS, 151, preloaded=True, sleep=cfg.psleep)
    a(f"""
{lh}a:
s_mov_b32 s{S_SPIN}, {cfg.spin}
{lh}:
buffer_load_dwordx4 {vr(KHB,4)}, v156, {sr(S_WS)}, s{S_HLO} offen sc1
buffer_load_dwordx4 {vr(KHB+4,4)}, v156, {sr(S_WS)}, s{S_HLO} offen offset:256 sc1
buffer_load_dwordx2 v[152:153], v157, {sr(S_WS)}, s{S_HLO} offen offset:512 sc1
s_waitcnt vmcnt(0)
v_max3_u32 v154, v{KHB}, v{KHB+1}, v{KHB+2}
v_max3_u32 v154, v154, v{KHB+3}, v{KHB+4}
v_max3_u32 v154, v154, v{KHB+5}, v{KHB+6}
v_max3_u32 v154, v154, v{KHB+7}, v152
v_max_u32 v154, v154, v153
v_cmp_eq_u32 vcc, -1, v154
s_cbranch_vccz {lo_}
s_sleep {cfg.psleep}
s_sub_u32 s{S_SPIN}, s{S_SPIN}, 1
s_cmp_lg_u32 s{S_SPIN}, 0
s_cbranch_scc1 {lh}
{lo_}:
v_mov_b64 v[154:155], 0
""")
    VHB = 152
    rest = [("B", 0), ("B", 1), ("B", 2)][cfg.hw:] + [("B", 7), ("A", 3), ("A", 4), ("A", 5), ("A", 6), ("A", 7)]
    stamp(10)
    a(mfma(SP[0], KHB, QB, MP))
    a(mfma(SP[1], KHB+4, QB+4, MP))
    wo_issue(*rest.pop(0))
    a("s_nop 5")
    for e in range(2):
        z = Z[e]
        for b in range(4): a(f"v_max3_f32 v{z[b]}, v{z[b]}, v{SD[e]+12+b}, v{SP[e]+b}")
        a(f"v_max3_f32 v{z[4]}, v{z[0]}, v{z[1]}, v{z[2]}\nv_max_f32 v{z[4]}, v{z[4]}, v{z[3]}\nv_mov_b32 v{z[5]}, v{z[4]}")
    for e in range(2): a(f"v_mov_b64 {vr(PP[e]+2,2)}, 0")
    for e in range(2): a(f"v_permlane32_swap_b32 v{Z[e][4]}, v{Z[e][5]}")
    a("s_nop 1")
    for e in range(2):
        z = Z[e]
        a(f"v_max_f32 v{z[4]}, v{z[4]}, v{z[5]}\nv_mul_f32 v{z[4]}, s{S_C}, v{z[4]}")
        for b in range(4): a(f"v_fma_f32 v{z[b]}, v{z[b]}, s{S_C}, -v{z[4]}")
        for b in range(4): a(f"v_exp_f32 v{z[b]}, v{z[b]}")
    for e in range(2):
        z = Z[e]
        a(f"v_add_f32 v{z[4]}, v{z[0]}, v{z[1]}\nv_add_f32 v{z[5]}, v{z[2]}, v{z[3]}\nv_add_f32 v{z[4]}, v{z[4]}, v{z[5]}\nv_mov_b32 v{z[5]}, v{z[4]}")
    a("s_nop 1")
    for e in range(2): a(f"v_permlane32_swap_b32 v{Z[e][4]}, v{Z[e][5]}")
    wo_issue(*rest.pop(0))
    for e in range(2): a(f"v_add_f32 v{Z[e][4]}, v{Z[e][4]}, v{Z[e][5]}")
    for e in range(2): a(f"v_rcp_f32 v{Z[e][4]}, v{Z[e][4]}")
    a("s_nop 0")
    for e in range(2):
        z = Z[e]
        for b in range(4): a(f"v_mul_f32 v{z[b]}, v{z[b]}, v{z[4]}")
        a(f"v_cvt_pk_bf16_f32 v{z[0]}, v{z[0]}, v{z[1]}\nv_cvt_pk_bf16_f32 v{z[1]}, v{z[2]}, v{z[3]}")
        for k in range(8): a(f"v_bfi_b32 v{PD[e]+k}, v{MA+k}, 0, v{z[k&1]}")
        for k in range(2): a(f"v_bfi_b32 v{PP[e]+k}, v{MA+8+k}, 0, v{z[k]}")
        a(mfma(OO[e], VB, PD[e], None)); a(mfma(OO[e], VB+4, PD[e]+4, OO[e])); a(mfma(OO[e], VHB, PP[e], OO[e]))
    for k in range(4): a(f"v_cvt_pk_bf16_f32 v{QB+k}, v{OO[0]+2*k}, v{OO[0]+2*k+1}")
    a(f"""
buffer_store_dwordx4 {vr(QB,4)}, v13, {sr(S_WS)}, s{S_OBO} offen sc1
; v5: wo fragments of the column block sent to the partner; v10/v11: exchange slots (in the V rings once they are dead)
v_xor_b32 v5, 64, v6
s_lshl_b32 s{S_T0}, s{S_WAVE}, 12
v_add_u32 v10, s{S_T0}, v13
v_xor_b32 v11, 0x2000, v10
v_add_u32 v10, {L_VR}, v10
v_add_u32 v11, {L_VR}, v11
s_nop 1
""")
    for k in range(4): a(f"v_cvt_pk_bf16_f32 v{QB+4+k}, v{OO[1]+8+2*k}, v{OO[1]+8+2*k+1}")
    a(f"buffer_store_dwordx4 {vr(QB+4,4)}, v13, {sr(S_WS)}, s{S_OBO} offen offset:1024 sc1")
    stamp(6)
    wo_issue(*rest.pop(0))
    a("s_waitcnt vmcnt(0)")
    flag(FL_OB)
    wo_paced(rest)
    progress(G_WO, "vmcnt(0)")
    stamp(7)
    if not cfg.nowait: poll(8, 16, S_WS, 3, sleep=cfg.psleep)
    stamp(8)
    OF = [64 + 4*j for j in range(16)]
    AK, AS = 32, 48
    def ofrag_loads(g0, g1):
        for j in range(4*g0, 4*g1):
            a(f"buffer_load_dwordx4 {vr(OF[j],4)}, v13, {sr(S_WS)}, s{S_G[j//4]} offen offset:{(j%4)*1024} sc1")
    def wrd(n, j):
        b = 128 + 8 * (n % 3)
        for cb in range(2):
            a(f"ds_read_b64_tr_b16 {vr(b+4*cb,2)}, v{6-cb} offset:{j*2048}")
            a(f"ds_read_b64_tr_b16 {vr(b+4*cb+2,2)}, v{6-cb} offset:{j*2048 + 1024}")
    def omm(seq, n, stop=16):
        b = lambda n: 128 + 8 * (n % 3)
        if n < 13:
            a(f"s_waitcnt lgkmcnt({4*min(2, stop-1-n)})")
            a(mfma(AS, b(n)+4, OF[seq[n]], AS if n else None))
            a(mfma(AK, b(n), OF[seq[n]], AK if n else None))
            if n + 3 < stop: wrd(n + 3, seq[n + 3])
        elif n == 13:
            for m_ in (13, 14, 15): a(f"s_waitcnt lgkmcnt({4*(15-m_)})"); a(mfma(AS, b(m_)+4, OF[seq[m_]], AS))
            for m_ in (13, 14, 15): a(mfma(AK, b(m_), OF[seq[m_]], AK))
    def send(off, nop=8):
        a(f"s_nop {nop}")
        for k in range(4): a(f"ds_write_b128 v10, {vr(AS+4*k,4)} offset:{off + k*1024}")
        a("s_waitcnt lgkmcnt(0)")
    def out_store(r, vout, half, pol):
        a(f"buffer_store_dwordx4 {vr(r,4)}, v{vout}, {sr(S_OUT)}, s{S_OUTO} offen offset:{16*half} {['', 'sc1', 'nt', 'sc0 sc1'][pol]}")
    def finish(off, pk, vout=None, pol=0):
        for k in range(4): a(f"ds_read_b128 {vr(AS+4*k,4)}, v11 offset:{off + k*1024}")
        for k in range(4):
            a(f"s_waitcnt lgkmcnt({3-k})")
            for i in range(4): a(f"v_add_f32 v{AK+4*k+i}, v{AK+4*k+i}, v{AS+4*k+i}")
            for i in range(2): a(f"v_cvt_pk_bf16_f32 v{pk+2*k+i}, v{AK+4*k+2*i}, v{AK+4*k+2*i+1}")
            if k % 2 and vout: out_store(pk + 2*(k-1), vout, k // 2, pol)
    og = [3, 0, 1, 2]; sb = [4*g + i for g in og for i in range(4)]; nb_ = 4 * cfg.nbg
    for g in og[:2]: ofrag_loads(g, g + 1)
    lds_wait(VA, VC, G_WO)
    a(f"s_setprio {cfg.oprio}")
    for n in range(3): wrd(n, sb[n])
    for q in range(cfg.nbg):
        a("s_waitcnt vmcnt(4)")
        if q < 2: ofrag_loads(og[q+2], og[q+2] + 1)
        for n in range(4*q, 4*q+4): omm(sb, n, nb_)
    if cfg.nbg == 1: a("s_waitcnt vmcnt(4)"); ofrag_loads(og[3], og[3] + 1)
    a(f"s_setprio {cfg.vprio}")
    progress(G_BRD)
    lds_wait(VA, VC, G_BRD)
    wo_issue("A", 0)
    for n in range(nb_, nb_ + 3): wrd(n, sb[n])
    for g in range(4): a(f"s_sub_u32 s{S_G[g]}, s{S_G[g]}, {WS_OB - WS_OA}")
    a(f"s_mov_b32 s{S_SPIN}, {cfg.spin}\ns_setprio 3\ns_waitcnt vmcnt(0)")
    stamp(9)
    a("s_barrier   ; the A waves have issued their O_A stores")
    stamp(11)
    for n in range(nb_, 16): omm(sb, n)
    a(f"v_add_u32 v6, {L_WOA}, v6\nv_add_u32 v5, {L_WOA}, v5")
    send(0, 6)
    stamp(12)
    a("s_barrier")
    stamp(13)
    for q, g in enumerate(og):
        ofrag_loads(g, g + 1)
        if q < 3: a("s_barrier")
    finish(0, 16)
    for n in range(3): wrd(n, sb[n])
    def ocheck(g):
        r = OF[4*g]
        a(f"v_max3_u32 v3, v{r}, v{r+1}, v{r+2}")
        for i in range(3, 15, 2): a(f"v_max3_u32 v3, v3, v{r+i}, v{r+i+1}")
        a(f"v_max_u32 v3, v3, v{r+15}\nv_cmp_eq_u32 vcc, -1, v3")
    for q, g in enumerate(og):
        a(f"s_waitcnt vmcnt({12-4*q})")
        ocheck(g)
        a(f"s_cbranch_vccnz L_retry{g}\nL_ok{g}:")
        if cfg.tailst == 1: stamp(1 + q)
        if cfg.tailst == 1 and q == 3: a(f"s_sub_u32 s{S_STAMP+5}, {cfg.spin}, s{S_SPIN}\ns_add_u32 s{S_STAMP+5}, s{S_STAMP+5}, s94")
        if q == 3: out_store(16, 7, 0, cfg.stb); out_store(20, 7, 1, cfg.stb)
        for n in range(4*q, 4*q+4): omm(sb, n)
    send(16384)
    a("s_barrier")
    finish(16384, 24, 9, cfg.sta)
    stamp(14)
    if cfg.probe >= -1:
        if cfg.probe == 15: a("s_waitcnt vmcnt(0)"); stamp(15)
        if cfg.probe == -1: a("s_mov_b32 s4, s92")
        a("s_add_u32 s4, s4, 6000\ns_mov_b32 s5, 200000\nL_pad:\ns_memrealtime s[90:91]\ns_waitcnt lgkmcnt(0)\ns_sub_u32 s6, s90, s4\ns_cmp_ge_i32 s6, 0\ns_cbranch_scc1 L_exit\ns_sub_u32 s5, s5, 1\ns_cmp_lg_u32 s5, 0\ns_cbranch_scc1 L_pad")
    if cfg.stamps:
        a("s_branch L_dump\nL_end:\ns_barrier\ns_barrier\ns_barrier\ns_barrier\nL_dump:")
        a(f"s_waitcnt vmcnt(0)\ns_memtime s[90:91]\ns_memrealtime s[96:97]\ns_waitcnt lgkmcnt(0)\ns_mov_b32 s{S_STAMP+15}, s90")
        a(f"s_mov_b32 s{S_STAMP+16}, s94\ns_mov_b32 s{S_STAMP+17}, s92\ns_mov_b32 s{S_STAMP+18}, s96\ns_getreg_b32 s{S_STAMP+19}, hwreg(HW_REG_XCC_ID)")
        a(f"s_lshl_b32 s{S_T0}, s2, 4\ns_add_u32 s{S_T0}, s{S_T0}, s{S_WAVE}\ns_lshl_b32 s{S_T0}, s{S_T0}, 7\ns_add_u32 s{S_T0}, s{S_T0}, {WS_ST}")
        a("v_mov_b32 v8, 0\ns_mov_b64 exec, 1")
        for i in range(5):
            for k in range(4): a(f"v_mov_b32 v{12+k}, s{S_STAMP+4*i+k}")
            a(f"buffer_store_dwordx4 v[12:15], v8, {sr(S_WS)}, s{S_T0} offen offset:{16*i}\ns_nop 1")
    else: a("L_end:")
    a("L_exit:\ns_endpgm")
    for q, g in enumerate(og):
        a(f"L_retry{g}:\ns_cmp_eq_u32 s{S_SPIN}, 0\ns_cbranch_scc1 L_ok{g}\ns_sub_u32 s{S_SPIN}, s{S_SPIN}, 1")
        ofrag_loads(g, g + 1)
        a("s_waitcnt vmcnt(0)")
        ocheck(g)
        a(f"s_cbranch_vccnz L_retry{g}")
        for g2 in og[q+1:]: ofrag_loads(g2, g2 + 1)
        a(f"s_branch L_ok{g}")
    a("L_code_end:")

    head = open("cdna_kernels/" + NAME + ".s.ref").read().split("\n")
    top = [l for l in head if l.startswith(";") and "@launch" not in l and not l.startswith("; Override") and not l.startswith("; grid=")]
    out = "\n".join(top) + f"""
; @launch grid=(256,1,1) block=(768,1,1) lds={LDS_BYTES}
.amdgcn_target "amdgcn-amd-amdhsa--gfx950"
.text
.globl {NAME}_kernel
.p2align 8
.type {NAME}_kernel,@function
{NAME}_kernel:
""" + a.text() + f""".section .rodata,"a"
.p2align 6
.amdhsa_kernel {NAME}_kernel
  .amdhsa_next_free_vgpr 168
  .amdhsa_next_free_sgpr 102
  .amdhsa_accum_offset 168
  .amdhsa_group_segment_fixed_size 0
  .amdhsa_kernarg_size 72
  .amdhsa_user_sgpr_count 2
  .amdhsa_user_sgpr_kernarg_segment_ptr 1
  .amdhsa_system_sgpr_workgroup_id_x 1
.end_amdhsa_kernel
"""
    return out

if __name__ == "__main__":
    cfg = Cfg()
    outp = "cdna_kernels/" + NAME + ".s"
    for arg in sys.argv[1:]:
        if arg.startswith("-o"): outp = arg[2:]
        else:
            k, v = arg.split("="); setattr(cfg, k, type(getattr(Cfg, k))(int(v)))
    open(outp, "w").write(gen(cfg))
    import subprocess
    r = subprocess.run(["clang", "-x", "assembler", "-target", "amdgcn-amd-amdhsa", "-mcpu=gfx950", "-c", outp, "-o", "gen_chk.o"], capture_output=True, text=True)
    if r.returncode: print(r.stderr); sys.exit(1)
    print("wrote", outp)
```

```python
import sys, math, struct, re

NAME = "concat_heads__softmax_full_mha__sliding_local_dilated__prompt"

class Cfg:
    prio_iter = 6
    spin = 400000
    map48 = 0
    depth = 6
    rot = 7
    rotb = 7
    pre = 0
    bdepth = 2
    pubs = 3
    ksleep = 4
    mprio = 0
    own = 1
    local = 1
    touch = 0
    certs = 2
    late = 6
    lastk = 6
    kpre = 0
    owng = 28
    gprio = 0
    la = 6
    stb = 1
    sta = 1
    nbg = 1
    marks = 1
    kvk = 0
    hw = 2
    csleep = 1
    psleep = 12
    lab = 2
    vprio = 3
    oprio = 0
    wodepth = 2
    cpf = 1
    ackwait = 1
    force_fallback = False
    stamps = 0
    probe = -2
    rt = 0
    tailst = 0
    nowait = 0

def f32(x): return "0x%08x" % struct.unpack("<I", struct.pack("<f", x))[0]

WS_KV = 0
WS_OA = 4 << 20
WS_OB = 6 << 20
WS_FL = 8 << 20
FL_KV = WS_FL
FL_OB = WS_FL + 256 * 128
FL_MK = WS_FL + 512 * 128
WS_ST = WS_FL + 768 * 128
WS_HL = 9 << 20
WS_SIZE = 10 << 20

L_W = 3 * 8192
L_QX = 0
L_KX = 8192
L_VR = 15 * 8192
L_MX = 155648
L_SY = L_MX + 2048
L_FX = L_SY + 96
L_WOB = 0
L_WOA = 7 * 8192
LDS_BYTES = 163840
G_Q, G_KV = 1, 2
G_BDONE, G_MARK, G_WO, G_BRD, G_BX = 16, 17, 18, 19, 20

S_XA, S_WA, S_WOA, S_XB, S_WB, S_WOB, S_OUT, S_DBG, S_WS = 24, 28, 32, 36, 40, 44, 48, 52, 56
S_WAVE, S_RB, S_HG, S_OBO, S_OAO, S_RBO, S_NB = 60, 61, 62, 63, 64, 65, 66
S_T0, S_T1, S_T2, S_T3 = 67, 68, 69, 70
S_LB, S_ROT, S_KX, S_KW = 71, 72, 73, 74
S_G = [76, 77, 78, 79]
S_MASK = 80
S_OFF, S_IT, S_PP, S_PIT, S_FL, S_PASS, S_SPIN, S_C = 82, 83, 84, 85, 86, 87, 88, 89
S_OUTO, S_HLO = 100, 101
S_HM = 75
S_STAMP = 4

class Asm:
    def __init__(self): self.L = []; self.nlab = 0
    def __call__(self, s):
        for line in s.strip("\n").split("\n"):
            line = line.strip()
            if not line: continue
            if line.endswith(":") or line.startswith(";") or line.startswith("."): self.L.append(line)
            else: self.L.append("    " + line)
    def lab(self, p="L"):
        self.nlab += 1; return f"{p}_{self.nlab}"
    def text(self): return "\n".join(self.L) + "\n"

def vr(a, n): return f"v[{a}:{a+n-1}]"
def sr(a, n=4): return f"s[{a}:{a+n-1}]"
def mfma(d, a_, b_, c): return f"v_mfma_f32_32x32x16_bf16 {vr(d,16)}, {vr(a_,4)}, {vr(b_,4)}, {vr(c,16) if c is not None else 0}"

def gen(cfg):
    a = Asm()
    def stamp(i):
        if cfg.tailst == 2: return
        if cfg.probe == i:
            a(f"s_memrealtime s[90:91]\ns_waitcnt lgkmcnt(0)\ns_mov_b32 s4, s90")
        if cfg.stamps == 1:
            a(f"{'s_memrealtime' if cfg.rt else 's_memtime'} s[90:91]\ns_waitcnt lgkmcnt(0)\ns_mov_b32 s{S_STAMP+i}, s90")
    def set_exec(nlanes):
        if nlanes < 32: a(f"s_mov_b64 exec, {hex((1 << nlanes) - 1)}")
        elif nlanes == 32: a("s_mov_b32 exec_hi, 0")
    def poll(voff, nlanes, srdi, tmp, preloaded=False, sleep=0):
        lp, dn, ck = a.lab("L_poll"), a.lab("L_pdone"), a.lab("L_pchk")
        set_exec(nlanes)
        a(f"s_mov_b32 s{S_SPIN}, {cfg.spin}")
        if preloaded: a(f"s_branch {ck}")
        a(f"{lp}:")
        a(f"buffer_load_dword v{tmp}, v{voff}, {sr(srdi)}, 0 offen sc1")
        a(f"{ck}:")
        a(f"s_waitcnt vmcnt(0)")
        a(f"v_cmp_ne_u32 vcc, 1, v{tmp}")
        a(f"s_cbranch_vccz {dn}")
        if sleep: a(f"s_sleep {sleep}")
        a(f"s_sub_u32 s{S_SPIN}, s{S_SPIN}, 1\ns_cmp_lg_u32 s{S_SPIN}, 0\ns_cbranch_scc1 {lp}")
        a(f"{dn}:")
        a("s_mov_b64 exec, -1")
    def lds_wait(vaddr, tmp, val, off=0, preloaded=False, sleep=0):
        l0, l1 = a.lab(), a.lab()
        if preloaded: a(f"v_cmp_gt_u32 vcc, {val}, v{tmp}\ns_cbranch_vccz {l1}")
        a(f"""
s_mov_b32 s{S_SPIN}, {cfg.spin}
{l0}:
ds_read_b32 v{tmp}, v{vaddr} offset:{off}
s_waitcnt lgkmcnt(0)
v_cmp_gt_u32 vcc, {val}, v{tmp}
s_cbranch_vccz {l1}
{'s_sleep %d' % sleep if sleep else ''}
s_sub_u32 s{S_SPIN}, s{S_SPIN}, 1
s_cmp_lg_u32 s{S_SPIN}, 0
s_cbranch_scc1 {l0}
{l1}:
""")

    stages = []
    for s in range(8): stages.append(dict(n=f"KV{s}", p=[("x", "A", s), ("w", "A", 1, s), ("w", "A", 2, s)]))
    for s in range(4): stages.append(dict(n=f"Q{s}", p=[("w", "A", 0, 2*s), ("w", "A", 0, 2*s+1)]))
    stage_of = {p: si for si, st in enumerate(stages) for p in st["p"]}
    seq = [p for st in stages for p in st["p"]]
    pre = [("w", "B", ty, 0) for ty in range(cfg.pre)]
    assert not pre or cfg.rot == cfg.rotb
    for p in pre: seq.append(p); stage_of[p] = 12
    D = cfg.depth
    land = {si: max(seq.index(p) for p in st["p"]) for si, st in enumerate(stages)}
    slot = {("x", "A", s): s for s in range(8)}; busy = {k: None for k in range(8, 19)}
    prog = []; nxt = [0]; passed = [-1]
    def try_issue(lim):
        while nxt[0] < min(lim, len(seq)):
            p = seq[nxt[0]]
            if p[0] == "w":
                ok = [k for k in busy if busy[k] is None or passed[0] >= busy[k] + 2]
                if not ok: return
                k = min(ok, key=lambda k: (-1 if busy[k] is None else busy[k]))
                busy[k] = stage_of[p]; slot[p] = k
            prog.append(("issue", p)); nxt[0] += 1
    try_issue(D); prog.append(("start",))
    for j in range(len(seq) - len(pre)):
        assert nxt[0] > j
        prog.append(("wait", j, nxt[0]))
        try_issue(j + 1 + D)
        for si in [si for si in land if land[si] == j]:
            prog.append(("bar", si)); passed[0] = si
            try_issue(j + 1 + D)
    assert nxt[0] == len(seq)
    grp = [[9, 4, 6], [8, 3, 5], [7, 10, 11], [12, 13, 14]]
    assert len(pre) <= 1
    early_free = sorted(busy, key=lambda k: busy[k])[:4]
    assert busy[early_free[3]] <= 9
    src = [slot[p] for p in pre] + early_free; src += [k for k in busy if k not in src]
    dst = grp[0][:len(pre)] + [15, 16, 17, 18]; dst += [k for k in busy if k not in dst]
    ren = dict(zip(src, dst))
    for p in slot:
        if p[0] == "w": slot[p] = ren[slot[p]]
    bst = [[("x", "B", s), ("w", "B", 0, s), ("w", "B", 1, s), ("w", "B", 2, s)] for s in range(8)]
    for s in range(8):
        slot[("x", "B", s)] = s % 3
        for ty in range(3): slot[("w", "B", ty, s)] = grp[s % 4][ty]

    kstate = {"k": None}
    def set_k(k):
        if kstate["k"] == k: return False
        if k: a(f"s_add_u32 s{S_KX}, s{S_ROT}, {k*128}\ns_and_b32 s{S_KX}, s{S_KX}, 1023")
        else: a(f"s_mov_b32 s{S_KX}, s{S_ROT}")
        a(f"s_mul_i32 s{S_KW}, s{S_KX}, 1536")
        kstate["k"] = k; return True
    def issue(p, vx, vw):
        if p[0] == "x":
            _, br, k = p
            a(f"s_add_u32 m0, s{S_LB}, {slot[p]*8192}")
            if not set_k(k): a("s_nop 0")
            srdi = S_XA if br == "A" else S_XB
            a(f"buffer_load_dwordx4 v{vx}, {sr(srdi)}, s{S_KX} offen lds")
            a(f"buffer_load_dwordx4 v{vx+1}, {sr(srdi)}, s{S_KX} offen offset:1024 lds")
        else:
            _, br, ty, k = p
            set_k(k)
            a(f"s_add_u32 m0, s{S_LB}, {slot[p]*8192}")
            a(f"s_add_u32 s{S_T0}, s{S_KW}, {ty*1024}")
            srdi = S_WA if br == "A" else S_WB
            a(f"buffer_load_dwordx4 v{vw}, {sr(srdi)}, s{S_T0} offen lds")
            a(f"buffer_load_dwordx4 v{vw+1}, {sr(srdi)}, s{S_T0} offen offset:1024 lds")
    def dma_offsets(br, vx, vw, t):
        a(f"""
s_and_b32 s{S_T0}, s{S_WAVE}, 3
s_lshl_b32 s{S_LB}, s{S_T0}, 11
s_lshl_b32 s{S_T1}, s{S_T0}, 4
v_lshrrev_b32 v{t}, 3, v1
v_add_u32 v{t+1}, s{S_T1}, v{t}
v_and_b32 v{t+2}, 7, v1
v_lshrrev_b32 v{t+3}, 4, v1
v_xor_b32 v{t+4}, v{t+2}, v{t+3}
v_lshlrev_b32 v{t+4}, 4, v{t+4}
v_and_b32 v{t+3}, 1, v{t+3}
v_lshlrev_b32 v{t+3}, 2, v{t+3}
v_xor_b32 v{t+3}, v{t+2}, v{t+3}
v_lshlrev_b32 v{t+3}, 4, v{t+3}          ; W chunk
v_mul_u32_u24 v{vw}, 3072, v{t+1}
s_lshl_b32 s{S_T1}, s{S_HG}, 7
v_add3_u32 v{vw}, v{vw}, v{t+3}, s{S_T1}
v_add_u32 v{vw+1}, {8*3072-1024}, v{vw}
s_lshl_b32 s{S_T0}, s{S_RB}, 16
""")
        if br == "B":
            a(f"""
v_and_b32 v{t+2}, 31, v{t+1}
v_lshrrev_b32 v{t+1}, 5, v{t+1}
v_lshl_add_u32 v{t+1}, v{t+2}, 1, v{t+1}
""")
        a(f"""
v_lshl_add_u32 v{vx}, v{t+1}, 10, v{t+4}
v_add_u32 v{vx}, s{S_T0}, v{vx}
v_xor_b32 v{vx+1}, 64, v{vx}
v_add_u32 v{vx+1}, {(8 if br == 'A' else 16)*1024-1024}, v{vx+1}
s_lshl_b32 s{S_ROT}, s{S_RB if cfg.map48 else S_HG}, 1
s_add_u32 s{S_ROT}, s{S_ROT}, s{S_HG if cfg.map48 else S_RB}
s_lshr_b32 s{S_T1}, s{S_RB if cfg.map48 else S_HG}, 2
s_add_u32 s{S_ROT}, s{S_ROT}, s{S_T1}
s_and_b32 s{S_ROT}, s{S_ROT}, {cfg.rot if br == 'A' else cfg.rotb}
s_lshl_b32 s{S_ROT}, s{S_ROT}, 7
""")

    ptr = [(S_XA, 0, 2 << 20), (S_WA, 8, 3 << 19), (S_WOA, 16, 1 << 19), (S_XB, 24, 2 << 20), (S_WB, 32, 3 << 19),
           (S_WOB, 40, 1 << 19), (S_OUT, 48, 4 << 20), (S_DBG, 56, 256), (S_WS, 64, WS_SIZE)]
    def ptr_loads(lst):
        for d, off, n in ptr:
            if d in lst: a(f"s_load_dwordx2 {sr(d,2)}, s[0:1], {off}")
    def srd_words(lst):
        for d, off, n in ptr:
            if d in lst: a(f"s_mov_b32 s{d+2}, {hex(n)}\ns_mov_b32 s{d+3}, 0x00020000")
    def oa_slot():
        a(f"""
s_lshl_b32 s{S_OAO}, s{S_RB}, 6
s_lshl_b32 s{S_T1}, s{S_HG}, 2
s_add_u32 s{S_OAO}, s{S_OAO}, s{S_T1}
s_and_b32 s{S_T1}, s{S_WAVE}, 3
s_add_u32 s{S_OAO}, s{S_OAO}, s{S_T1}
s_lshl_b32 s{S_OAO}, s{S_OAO}, 10
s_add_u32 s{S_OAO}, s{S_OAO}, {WS_OA}
""")
    a("; generated by gen/gen.py\ns_cmp_ge_u32 s2, 256\ns_cbranch_scc1 L_exit")
    if cfg.stamps: a("s_memrealtime s[92:93]\ns_memtime s[94:95]")
    elif cfg.probe >= -1: a("s_memrealtime s[92:93]")
    ptr_loads([S_XA, S_WA])
    a(f"""
v_lshrrev_b32 v2, 6, v0
v_and_b32 v1, 63, v0
v_readfirstlane_b32 s{S_WAVE}, v2
""")
    if cfg.map48: a(f"""
s_bfe_u32 s{S_HG}, s2, 0x30003
s_and_b32 s{S_RB}, s2, 7
s_lshl_b32 s{S_RB}, s{S_RB}, 2
s_lshr_b32 s{S_T2}, s2, 6
s_or_b32 s{S_RB}, s{S_RB}, s{S_T2}
""")
    else: a(f"""
s_and_b32 s{S_HG}, s2, 1
s_lshl_b32 s{S_HG}, s{S_HG}, 2
s_bfe_u32 s{S_T2}, s2, 0x20003
s_or_b32 s{S_HG}, s{S_HG}, s{S_T2}
s_and_b32 s{S_RB}, s2, 6
s_lshl_b32 s{S_RB}, s{S_RB}, 2
s_lshr_b32 s{S_T2}, s2, 5
s_or_b32 s{S_RB}, s{S_RB}, s{S_T2}
""")
    a(f"""
s_bitcmp1_b32 s{S_WAVE}, 2
s_cbranch_scc1 L_loader
""")
    if cfg.cpf:
        a(f"""
s_cmp_lg_u32 s{S_WAVE}, 8
s_cbranch_scc1 L_nopf
s_getpc_b64 s[96:97]
L_pc:
s_lshr_b32 s{S_T1}, s2, 3
s_lshl_b32 s{S_T1}, s{S_T1}, 10
v_lshl_add_u32 v2, v1, 4, s{S_T1}
v_min_u32 v2, L_code_end - L_pc - 16, v2
v_mov_b32 v3, s97
v_add_co_u32 v2, vcc, s96, v2
s_nop 1
v_addc_co_u32 v3, vcc, 0, v3, vcc
global_load_dwordx4 v[164:167], v[2:3], off
L_nopf:
""")
    a(f"s_cmp_lt_u32 s{S_WAVE}, 4\ns_cbranch_scc1 L_gemm\ns_branch L_spare")

    AQ = (8, 12); NM = (16, 32); O = (48, 64); S = (80, 96); RING = 112; AM = 160
    HX, HW = 164, 166
    CW, CL, CR, CM, CP, CG, CA = 144, 145, 146, 147, 148, 149, 150
    S_VR = S_PP
    S_FST, S_NXT, S_OWNM, S_C1, S_C2 = 76, 77, 78, 79, 75
    def kv(t): return RING + 4 * (t % 4), 128 + 8 * (t % 2), 132 + 8 * (t % 2)
    def acc_init():
        for q in range(2):
            for k in range(0, 10, 2): a(f"v_mov_b64 {vr(O[q]+k,2)}, 0")
        for k in range(0, 8, 2): a(f"v_mov_b64 {vr(S[1]+8+k,2)}, 0")
    def a_setup():
        ptr_loads([S_WB, S_DBG, S_WS]); srd_words([S_WB, S_DBG, S_WS])
        oa_slot()
        a(f"""
s_mov_b32 s{S_MASK}, 0xffff
s_mov_b32 s{S_MASK+1}, 0xffff
s_mov_b32 s{S_PASS}, 0
s_lshr_b32 s{S_T2}, s{S_WAVE}, 3
s_lshl_b32 s{S_T0}, s{S_T2}, 15
s_add_u32 s{S_OAO}, s{S_OAO}, s{S_T0}
s_lshl_b32 s{S_T0}, s{S_WAVE}, 2
s_add_u32 s{S_T0}, s{S_T0}, {L_SY}
v_mov_b32 v5, s{S_T0}
v_mov_b32 v6, 0
ds_write_b32 v5, v6
ds_write_b32 v5, v6 offset:32
; tile pairs: the other 31 pairs are listed from the start of the own group of 8 row blocks on (wrapping round);
s_mov_b32 s{S_C1}, 8192
s_mov_b32 s{S_C2}, 12288
s_and_b32 s{S_T0}, s{S_RB}, 7                ; r
s_xor_b32 s{S_T1}, s{S_T2}, 1
s_and_b32 s{S_T3}, s{S_RB}, 24
s_cmp_ge_u32 s{S_T1}, s{S_T0}
s_addc_u32 s{S_NXT}, s{S_T3}, s{S_T1}
s_lshl_b32 s{S_NXT}, s{S_NXT}, 12
s_xor_b32 s{S_OWNM}, s{S_T0}, s{S_T1}
s_and_b32 s{S_OWNM}, s{S_OWNM}, 1
s_add_u32 s{S_OWNM}, s{S_OWNM}, s{S_RB}
s_sub_u32 s{S_OWNM}, s{S_OWNM}, 2
s_lshl_b32 s{S_OWNM}, s{S_OWNM}, 12
s_cmp_ge_u32 s{S_T1}, s{S_T0}
s_cselect_b32 s{S_OWNM}, -1, s{S_OWNM}
s_lshl_b32 s{S_FST}, s{S_RB}, 12
s_cmp_eq_u32 s{S_T2}, 0
s_cbranch_scc1 L_order
s_mov_b32 s{S_FST}, s{S_NXT}
s_cmp_eq_u32 s{S_FST}, s{S_OWNM}
s_cselect_b32 s{S_T0}, s{S_C2}, s{S_C1}
s_add_u32 s{S_NXT}, s{S_FST}, s{S_T0}
L_order:
""")
        if not cfg.local:
            assert not cfg.own
            a(f"s_lshl_b32 s{S_FST}, s{S_T2}, 16\ns_add_u32 s{S_NXT}, s{S_FST}, 4096\ns_mov_b32 s{S_T3}, 0")
        a(f"""
s_lshl_b32 s{S_T0}, s{S_HG}, 5
s_add_u32 s{S_T0}, s{S_T0}, s{S_T3}
s_lshl_b32 s{S_T0}, s{S_T0}, 7
s_add_u32 s{S_T0}, s{S_T0}, {FL_KV}
v_lshlrev_b32 v162, 7, v1
v_add_u32 v162, s{S_T0}, v162
v_mov_b32 v151, {L_SY + 48}
ds_write_b32 v151, v6
s_and_b32 s{S_T0}, s{S_WAVE}, 3
s_lshl_b32 s{S_T1}, s{S_T0}, 1
s_add_u32 s{S_T1}, s{S_T1}, s{S_T2}
s_lshl_b32 s{S_T3}, s{S_T1}, 6
v_add_u32 v16, s{S_T3}, v1
v_lshlrev_b32 v18, 2, v16
v_lshlrev_b32 v16, 4, v16
v_add_u32 v16, {L_QX}, v16
v_add_u32 v18, {L_MX}, v18
v_xor_b32 v17, 1024, v16
v_xor_b32 v19, 256, v18
s_lshl_b32 s{S_T1}, s{S_HG}, 2
s_add_u32 s{S_T0}, s{S_T0}, s{S_T1}
s_lshl_b32 s{S_T0}, s{S_T0}, 17
v_lshlrev_b32 v163, 4, v1
v_add_u32 v3, s{S_T0}, v163
v_and_b32 v4, 15, v1
v_lshlrev_b32 v4, 4, v4
v_lshrrev_b32 v7, 5, v1
v_lshl_add_u32 v4, v7, 8, v4
; V ring; partial results go to the own ring and come from the partner's
s_sub_u32 s{S_T0}, s{S_WAVE}, 4
s_lshl_b32 s{S_VR}, s{S_T0}, 12
s_add_u32 s{S_VR}, s{S_VR}, {L_VR}
v_add_u32 v4, s{S_VR}, v4
v_add_u32 v{CW}, s{S_VR}, v163
v_lshl_add_u32 v{CL}, v1, 2, s{S_VR}
s_xor_b32 s{S_T0}, s{S_T0}, 4
s_lshl_b32 s{S_T1}, s{S_T0}, 12
s_add_u32 s{S_T1}, s{S_T1}, {L_VR}
v_add_u32 v{CR}, s{S_T1}, v163
v_lshl_add_u32 v{CM}, v1, 2, s{S_T1}
s_lshl_b32 s{S_T0}, s{S_T0}, 2
s_add_u32 s{S_T0}, s{S_T0}, {L_SY + 16}
v_mov_b32 v{CP}, s{S_T0}
s_and_b32 s{S_T0}, s{S_WAVE}, 3
s_lshl_b32 s{S_T0}, s{S_T0}, 2
s_add_u32 s{S_T0}, s{S_T0}, {L_SY}
v_mov_b32 v{CG}, s{S_T0}
v_and_b32 v{CA}, 3, v1
v_lshlrev_b32 v{CA}, 2, v{CA}
v_add_u32 v{CA}, {L_SY}, v{CA}
v_mov_b32 v2, 0xdddd
v_and_b32 v6, 27, v1
v_cmp_eq_u32 vcc, 16, v6
v_mov_b32 v6, 0x3f803f80
s_nop 0
v_cndmask_b32 v6, 0, v6, vcc
v_mov_b32 v7, v6
""")
        for t in range(2):
            for k in range(0, 8, 2): a(f"v_mov_b64 {vr(kv(t)[1]+k,2)}, v[6:7]")
        acc_init()
        a("s_waitcnt lgkmcnt(0)")
    def ld(t, adv=True):
        off = (t % 2) * 2048; d = (t % 4) * 1024 - off - 1024
        a(f"s_add_u32 m0, s{S_VR}, {d}" if d >= 0 else f"s_sub_u32 m0, s{S_VR}, {-d}")
        a(f"buffer_load_dwordx4 {vr(kv(t)[0],4)}, v3, {sr(S_WS)}, s{S_OFF} offen offset:{off} sc1")
        a(f"buffer_load_dwordx4 v3, {sr(S_WS)}, s{S_OFF} offen offset:{off+1024} sc1 lds")
        if t % 2 == 1 and adv and not cfg.local: a(f"s_add_u32 s{S_OFF}, s{S_OFF}, 4096")
        elif t % 2 == 1 and adv: a(f"s_cmp_eq_u32 s{S_OFF}, s{S_OWNM}\ns_cselect_b32 s{S_T0}, s{S_C2}, s{S_C1}\ns_add_u32 s{S_OFF}, s{S_OFF}, s{S_T0}\ns_bitset0_b32 s{S_OFF}, 17")
    def vrd(t):
        a(f"s_mov_b64 exec, {sr(S_MASK,2)}")
        a(f"ds_read_b128 {vr(kv(t)[1],4)}, v4 offset:{(t%4)*1024}\nds_read_b128 {vr(kv(t)[2],4)}, v4 offset:{(t%4)*1024+512}")
        a("s_mov_b64 exec, -1")

    a("L_loader:")
    dma_offsets("A", HX, HW, 10)
    srd_words([S_XA, S_WA])
    a("s_waitcnt lgkmcnt(0)")
    for k, op in enumerate(prog):
        if op[0] == "issue": issue(op[1], HX, HW)
        elif op[0] == "start":
            stamp(0)
            a("s_call_b64 s[98:99], L_asetup")
        elif op[0] == "wait":
            if k + 1 < len(prog) and prog[k+1][0] != "wait":
                a(f"s_waitcnt vmcnt({2 * (op[2] - op[1] - 1)})")
        else:
            si = op[1]
            if si in (0, 7, 8, 11): stamp({0: 1, 7: 3, 8: 4, 11: 5}[si])
            a(f"s_barrier   ; stage {stages[si]['n']} landed")
    a(f"s_mov_b32 s{S_PIT}, {0x82 | (1 << cfg.prio_iter)}\ns_setprio 2")
    def handover():
        a("s_barrier")
        stamp(2)
        a(f"ds_read_b128 {vr(AQ[0],4)}, v17\nds_read_b128 {vr(AQ[1],4)}, v16\nds_read_b32 v{AM}, v19\nds_read_b32 v{AM+1}, v18")
    def nm_init():
        for q in range(2):
            a(f"v_mov_b32 v{NM[q]}, v{AM+q}\nv_mov_b32 v{NM[q]+1}, v{AM+q}")
            for k in range(2, 16, 2): a(f"v_mov_b64 {vr(NM[q]+k,2)}, {vr(NM[q],2)}")
    def unit(u, mode):
        t, q = u // 2, u % 2
        c = S[u % 2]; o = S[(u + 1) % 2]
        tp, qp = (u - 1) // 2, (u - 1) % 2
        tn, qn = (u + 1) // 2, (u + 1) % 2
        end = (mode == 1 and u == 7) or (mode == 2 and u == 3)
        e = lambda i: a(f"v_exp_f32 v{c+i}, v{c+i}")
        e(0); e(1)
        a(f"v_smfmac_f32_32x32x32_bf16 {vr(O[qp],16)}, {vr(kv(tp)[2],4)}, {vr(o+8,8)}, v2")
        if q == 0:
            if mode == 0 or (mode == 1 and t == 0): ld(t + 3, mode == 0)
            a("s_waitcnt lgkmcnt(0)")
        e(2); e(3)
        if q == 1 and not end:
            if mode != 2: a(f"s_waitcnt vmcnt({4 - 2*t if mode else 4})")
            vrd(t + 1)
        if mode == 1 and u == 7: a(f"ds_read_b32 v7, v{CG}")
        e(4)
        if not end: a(mfma(o, kv(tn)[0], AQ[qn], NM[qn]))
        for i in range(5, 11): e(i)
        a(f"v_smfmac_f32_32x32x32_bf16 {vr(O[q],16)}, {vr(kv(t)[1],4)}, {vr(c,8)}, v2")
        e(11); e(12)
        if mode == 1 and u == 7:
            a(f"s_setprio 3\nds_write_b128 v{CW}, {vr(O[0],4)}\nds_write_b128 v{CW}, {vr(O[0]+4,4)} offset:1024\nds_write_b32 v{CL}, v{O[0]+8} offset:2048")
        e(13); e(14); e(15)
    if cfg.own:
        handover()
        a(f"ds_read_b128 {vr(kv(0)[0],4)}, v16 offset:{L_KX}\nds_read_b128 {vr(kv(1)[0],4)}, v17 offset:{L_KX}")
        a(f"s_mov_b32 s{S_OFF}, s{S_NXT}\ns_mov_b32 s{S_IT}, 0\ns_waitcnt lgkmcnt(0)")
        nm_init()
        a(mfma(S[0], kv(0)[0], AQ[0], NM[0]))
        vrd(0)
        a("s_nop 7")
        stamp(6)
        for u in range(4): unit(u, 2)
        lds_wait(151, 7, 1, sleep=1)
        stamp(7)
        for t in (2, 3, 4): ld(t)
        a("v_mov_b32 v6, 1\nds_write_b32 v5, v6\ns_waitcnt vmcnt(4)")
        a(mfma(S[0], kv(2)[0], AQ[0], NM[0]))
        vrd(2)
        a("s_nop 6")
        stamp(8)
        a("s_branch L_loop_mid")
    a("L_handover:")
    handover()
    l = a.lab()
    a(f"s_cmp_lg_u32 s{S_WAVE}, 8\ns_cbranch_scc1 {l}")
    poll(162, 8 if cfg.local else 32, S_WS, 6, preloaded=bool(cfg.kpre), sleep=cfg.ksleep)
    a(f"ds_write_b32 v151, v21\n{l}:\nv_mov_b32 v6, 1\nL_a_start:\ns_waitcnt lgkmcnt(0)")
    nm_init()
    lds_wait(151, 7, 1, sleep=1)
    stamp(7)
    a(f"s_mov_b32 s{S_OFF}, s{S_FST}\ns_mov_b32 s{S_IT}, 0")
    ld(0); ld(1, False); a(f"s_mov_b32 s{S_OFF}, s{S_NXT}"); ld(2)
    a("ds_write_b32 v5, v6\ns_waitcnt vmcnt(4)")
    a(mfma(S[0], kv(0)[0], AQ[0], NM[0]))
    vrd(0)
    if cfg.own: a("s_setprio 1\ns_nop 6")
    else: a(f"s_cmp_lt_u32 s{S_WAVE}, 8\ns_cbranch_scc1 L_kp\ns_setprio 1\nL_kp:\ns_nop 5")
    stamp(8)
    def body(last):
        for u in range(8):
            if u == 4 and not last: a("L_loop_mid:")
            if last and u == cfg.lastk: a("s_setprio 0")
            unit(u, 1 if last else 0)
        if cfg.tailst == 4:
            a("s_memtime s[90:91]\n" + "".join(f"s_mov_b32 s{S_STAMP+k}, s{S_STAMP+k+1}\n" for k in range(7)) + f"s_waitcnt lgkmcnt(0)\ns_mov_b32 s{S_STAMP+7}, s90")
    a(".p2align 3\nL_loop:")
    body(False)
    thr = f32(2.0**40) if not cfg.force_fallback else f32(2.0**-3)
    assert 1 < cfg.prio_iter < 7
    a(f"""
s_add_u32 s{S_IT}, s{S_IT}, 1
s_bitcmp0_b32 s{S_PIT}, s{S_IT}
s_cbranch_scc1 L_loop
s_cmp_eq_u32 s{S_IT}, 7
s_cbranch_scc1 L_last
s_cmp_eq_u32 s{S_IT}, 1
s_cbranch_scc1 L_rest
s_cmp_ge_u32 s{S_WAVE}, 8
s_cbranch_scc1 L_late
s_setprio 0
s_branch L_loop
L_late:
ds_write_b32 v5, v2 offset:32
s_branch L_loop
L_rest:
""")
    lds_wait(CA, 7, G_KV, sleep=1)
    a("s_branch L_loop\nL_last:")
    body(True)
    def cread(): a(f"ds_read_b128 {vr(24,4)}, v{CR}\nds_read_b128 {vr(28,4)}, v{CR} offset:1024\nds_read_b32 v32, v{CM} offset:2048")
    a(f"""
; state: 2 = partial handed over, 3 = own tile safe, 4 = unsafe, 5 = true max written, 6 = second partial handed over
s_lshl_b32 s{S_T3}, s{S_PASS}, 2
s_add_u32 s{S_T3}, s{S_T3}, 2
v_smfmac_f32_32x32x32_bf16 {vr(O[1],16)}, {vr(kv(3)[2],4)}, {vr(S[1]+8,8)}, v2
v_mov_b32 v6, s{S_T3}
s_waitcnt lgkmcnt(0)
ds_write_b32 v5, v6
ds_read_b32 v21, v{CP}
""")
    cread()
    a(f"s_mov_b32 s{S_T2}, {thr}")
    stamp(9)
    lds_wait(CG, 7, G_BDONE, preloaded=True)
    a(f"s_waitcnt lgkmcnt(0)\nv_cmp_gt_u32 vcc, s{S_T3}, v21\ns_cbranch_vccz L_final")
    lds_wait(CP, 21, f"s{S_T3}", sleep=cfg.csleep)
    cread()
    a("s_waitcnt lgkmcnt(0)\nL_final:")
    stamp(10)
    a(f"v_add_f32 v32, v32, v{O[1]+8}")
    for k in range(8): a(f"v_add_f32 v{24+k}, v{24+k}, v{O[1]+k}")
    a(f"""
v_max3_f32 v6, |v24|, |v25|, |v26|
v_max3_f32 v7, |v27|, |v28|, |v29|
v_max3_f32 v6, v6, |v30|, |v31|
v_max_f32 v6, v6, v7
v_mul_f32 v6, {f32(2.0**-80)}, v6
v_max_f32 v6, v6, v32
v_cmp_nlt_f32 vcc, v6, s{S_T2}
v_rcp_f32 v32, v32
s_cbranch_vccnz L_unsafe
L_store:
""")
    for k in range(8): a(f"v_mul_f32 v{24+k}, v{24+k}, v32")
    for k in range(4): a(f"v_cvt_pk_bf16_f32 v{36+k}, v{24+2*k}, v{24+2*k+1}")
    for k in range(4): a(f"v_min_u32 v{36+k}, -2, v{36+k}")
    a(f"buffer_store_dwordx4 {vr(36,4)}, v163, {sr(S_WS)}, s{S_OAO} offen sc1")
    stamp(11)
    a(f"s_cmp_lg_u32 s{S_PASS}, 0\ns_cbranch_scc1 L_stored\nv_mov_b32 v6, 3\nds_write_b32 v5, v6")
    lds_wait(CP, 21, 3, sleep=cfg.csleep)
    a("v_cmp_lt_u32 vcc, 3, v21\ns_cbranch_vccnz L_fallback\nL_stored:")
    a("s_barrier")
    if cfg.ackwait: a("s_waitcnt vmcnt(0)")
    stamp(12)
    a("s_barrier\ns_branch L_end")

    a(f"""
L_unsafe:
s_cmp_lg_u32 s{S_PASS}, 0
s_cbranch_scc1 L_store
v_mov_b32 v6, 4
ds_write_b32 v5, v6
L_fallback:
s_mov_b32 s{S_PASS}, 1
s_lshr_b32 s{S_OFF}, s{S_WAVE}, 3
s_lshl_b32 s{S_OFF}, s{S_OFF}, 16
v_mov_b32 v{AM}, 0xff800000
v_mov_b32 v{AM+1}, 0xff800000
L_fb_loop:
buffer_load_dwordx4 {vr(RING,4)}, v3, {sr(S_WS)}, s{S_OFF} offen sc1
s_waitcnt vmcnt(0)
{mfma(S[0], RING, AQ[0], None)}
{mfma(S[1], RING, AQ[1], None)}
s_nop 15
""")
    for q in range(2):
        for i in range(0, 16, 2): a(f"v_max3_f32 v{AM+q}, v{AM+q}, v{S[q]+i}, v{S[q]+i+1}")
    a(f"""
s_add_u32 s{S_OFF}, s{S_OFF}, 2048
s_and_b32 s{S_T0}, s{S_OFF}, 0xffff
s_cbranch_scc1 L_fb_loop
v_mov_b32 v6, v{AM}
v_mov_b32 v7, v{AM+1}
s_nop 1
v_permlane32_swap_b32 v{AM}, v6
v_permlane32_swap_b32 v{AM+1}, v7
s_nop 1
v_max_f32 v{AM}, v{AM}, v6
v_max_f32 v{AM+1}, v{AM+1}, v7
s_sub_u32 s{S_T0}, s{S_WAVE}, 4
s_lshl_b32 s{S_T1}, s{S_T0}, 9
s_add_u32 s{S_T1}, s{S_T1}, {L_FX}
v_lshl_add_u32 v16, v1, 2, s{S_T1}
s_xor_b32 s{S_T0}, s{S_T0}, 4
s_lshl_b32 s{S_T1}, s{S_T0}, 9
s_add_u32 s{S_T1}, s{S_T1}, {L_FX}
v_lshl_add_u32 v17, v1, 2, s{S_T1}
ds_write_b32 v16, v{AM}
ds_write_b32 v16, v{AM+1} offset:256
v_mov_b32 v6, 5
s_waitcnt lgkmcnt(0)
ds_write_b32 v5, v6
""")
    lds_wait(CP, 21, 5)
    a(f"""
ds_read_b32 v20, v17 offset:256
ds_read_b32 v21, v17
s_waitcnt lgkmcnt(0)
v_max_f32 v{AM}, v{AM}, v20
v_max_f32 v{AM+1}, v{AM+1}, v21
v_sub_f32 v{AM}, 0, v{AM}
v_sub_f32 v{AM+1}, 0, v{AM+1}
""")
    acc_init()
    a("s_branch L_a_start")

    a("L_asetup:")
    a_setup()
    a("s_setpc_b64 s[98:99]")
    lskip = a.lab()
    a(f"""
L_spare:
s_call_b64 s[98:99], L_asetup
s_sub_u32 s{S_T0}, s{S_WAVE}, 8
s_lshl_b32 s{S_T0}, s{S_T0}, 4
s_or_b32 s{S_T3}, s{S_T0}, s2
s_cmp_ge_u32 s{S_T3}, 12
s_cbranch_scc1 {lskip}
v_lshlrev_b32 v20, 7, v1
s_lshl_b32 s{S_T1}, s2, 13
s_add_u32 s{S_T1}, s{S_T1}, {WS_FL}
s_lshl_b32 s{S_T0}, s2, 2
buffer_store_dwordx4 {vr(O[0],4)}, v20, {sr(S_WS)}, s{S_T1} offen sc1
{lskip}:
s_mov_b32 s{S_PIT}, {0x82 | (1 << cfg.late)}
s_setprio {3 if cfg.own else 1}
""")
    PUB = 8 + cfg.pubs
    for si in range(12):
        if si == cfg.certs:
            l = a.lab()
            a(f"s_cmp_ge_u32 s{S_T3}, 12\ns_cbranch_scc1 {l}\ns_lshl_b32 s{S_T0}, s2, 2\nv_mov_b32 v21, 1\ns_waitcnt vmcnt(0)\ns_mov_b64 exec, 1")
            a(f"buffer_store_dword v21, v163, {sr(S_DBG)}, s{S_T0} offen sc1\ns_mov_b64 exec, -1\n{l}:")
        if si == PUB - 3:
            l = a.lab()
            a(f"v_lshlrev_b32 v20, 2, v1\ns_cmp_lg_u32 s{S_WAVE}, 8\ns_cbranch_scc1 {l}\nbuffer_load_dword v21, v20, {sr(S_DBG)}, 0 offen sc1\n{l}:")
        if si == PUB:
            l = a.lab()
            a(f"s_cmp_lg_u32 s{S_WAVE}, 8\ns_cbranch_scc1 {l}")
            poll(20, 12, S_DBG, 21, preloaded=True, sleep=4)
            a(f"s_lshl_b32 s{S_T0}, s{S_HG}, 5\ns_add_u32 s{S_T0}, s{S_T0}, s{S_RB}\ns_lshl_b32 s{S_T0}, s{S_T0}, 7\ns_add_u32 s{S_T0}, s{S_T0}, {FL_KV}")
            a(f"v_mov_b32 v21, 1\ns_mov_b64 exec, 1\ns_barrier\nbuffer_store_dword v21, v20, {sr(S_WS)}, s{S_T0} offen sc1\ns_mov_b64 exec, -1\ns_branch {l}b\n{l}:\ns_barrier\n{l}b:")
        else: a("s_barrier")
    a(f"s_cmp_lg_u32 s{S_WAVE}, 8\ns_cbranch_scc1 L_handover\ns_waitcnt vmcnt(0)")
    stamp(6)
    if cfg.kpre: a(f"s_mov_b64 exec, 0xff\nbuffer_load_dword v6, v162, {sr(S_WS)}, 0 offen sc1\ns_mov_b64 exec, -1")
    a("s_branch L_handover")

    LX, LW = 152, 154
    VS, VV, VA, VC = 158, 159, 160, 161
    NEGM, QXA, WO = 162, 164, 166
    a("L_gemm:\ns_setprio 2")
    rest = [S_WOA, S_XB, S_WB, S_WOB, S_OUT, S_DBG, S_WS]
    ptr_loads(rest); srd_words(rest)
    oa_slot()
    dma_offsets("B", LX, LW, 16)
    a(f"""
s_cmp_eq_u32 s{S_RB}, 0
s_cselect_b32 s{S_HM}, 15, 0
s_and_b32 s{S_T0}, s2, 7
s_lshl_b32 s{S_RBO}, s{S_T0}, 2
s_lshr_b32 s{S_T2}, s2, 6
s_or_b32 s{S_RBO}, s{S_RBO}, s{S_T2}
s_bfe_u32 s{S_NB}, s2, 0x30003
s_lshl_b32 s{S_T0}, s{S_NB}, 7
v_lshl_add_u32 v{WO}, v16, 10, v19
v_add_u32 v{WO}, s{S_T0}, v{WO}
v_add_u32 v{WO+1}, 7168, v{WO}
s_lshl_b32 s{S_PIT}, s{S_RBO}, 1
s_add_u32 s{S_PIT}, s{S_PIT}, s{S_NB}
s_and_b32 s{S_PIT}, s{S_PIT}, 7
s_lshl_b32 s{S_PP}, s{S_PIT}, 16
s_lshl_b32 s{S_T0}, s{S_LB}, 3
s_add_u32 s{S_PP}, s{S_PP}, s{S_T0}
s_mov_b32 s{S_C}, {f32(0.25 * math.log2(math.e))}
s_lshl_b32 s{S_T0}, s{S_WAVE}, 2
s_add_u32 s{S_T0}, s{S_T0}, {L_SY}
v_mov_b32 v{VS}, s{S_T0}
s_and_b32 s{S_T0}, s{S_WAVE}, 1
s_lshr_b32 s{S_T1}, s{S_WAVE}, 1
v_and_b32 v14, 31, v1
v_lshrrev_b32 v15, 5, v1             ; h
v_bfe_u32 v16, v1, 1, 3
v_xor_b32 v16, v16, v15
v_lshlrev_b32 v16, 4, v16
v_lshl_add_u32 v2, v14, 7, v16
s_lshl_b32 s{S_T2}, s{S_T0}, 12
v_add_u32 v2, s{S_T2}, v2
v_xor_b32 v3, 32, v2
v_xor_b32 v4, 64, v2
v_xor_b32 v5, 96, v2
v_bfe_u32 v16, v1, 2, 2              ; r4
v_lshl_add_u32 v17, v15, 3, v16      ; 8h + r4
v_and_b32 v18, 3, v1
v_lshlrev_b32 v{VA}, 2, v18
v_add_u32 v{VA}, {L_SY}, v{VA}
v_lshlrev_b32 v18, 3, v18            ; 8*c4
v_bfe_u32 v19, v1, 4, 1
v_lshl_add_u32 v18, v19, 5, v18      ; + 32*nsub
v_bfe_u32 v19, v1, 3, 1              ; (r4>>1)&1
v_xor_b32 v19, s{S_T1}, v19
v_lshl_add_u32 v18, v19, 6, v18
v_lshl_add_u32 v10, v17, 7, v18
v_add_u32 v10, {L_W}, v10
v_add_u32 v11, 0x10000, v10
s_lshl_b32 s{S_T2}, s{S_T1}, 2
s_add_u32 s{S_T2}, s{S_T2}, s{S_T0}
s_lshl_b32 s{S_T2}, s{S_T2}, 6
v_add_u32 v{QXA}, s{S_T2}, v1
v_lshlrev_b32 v{QXA+1}, 2, v{QXA}
v_lshlrev_b32 v{QXA}, 4, v{QXA}
v_add_u32 v{QXA}, {L_QX}, v{QXA}
v_add_u32 v{QXA+1}, {L_MX}, v{QXA+1}
s_lshl_b32 s{S_T2}, s{S_HG}, 1
s_add_u32 s{S_T2}, s{S_T2}, s{S_T1}
s_lshl_b32 s{S_OBO}, s{S_T2}, 11
s_lshl_b32 s{S_T2}, s{S_T2}, 18
s_lshl_b32 s{S_T3}, s{S_RB}, 1
s_add_u32 s{S_T3}, s{S_T3}, s{S_T0}
s_lshl_b32 s{S_T3}, s{S_T3}, 11
s_add_u32 s{S_T2}, s{S_T2}, s{S_T3}
s_lshl_b32 s{S_T3}, s{S_T3}, 4
s_add_u32 s{S_OBO}, s{S_OBO}, s{S_T3}
s_add_u32 s{S_OBO}, s{S_OBO}, {WS_OB}
s_lshl_b32 s{S_FL}, s{S_HG}, 5
s_add_u32 s{S_FL}, s{S_FL}, s{S_RB}
s_lshl_b32 s{S_HLO}, s{S_FL}, 2
s_add_u32 s{S_HLO}, s{S_HLO}, s{S_WAVE}
s_lshl_b32 s{S_HLO}, s{S_HLO}, 10
s_add_u32 s{S_HLO}, s{S_HLO}, {WS_HL}
s_lshl_b32 s{S_FL}, s{S_FL}, 5
s_add_u32 s{S_FL}, s{S_FL}, s{S_WAVE}
s_lshl_b32 s{S_FL}, s{S_FL}, 2
s_add_u32 s{S_FL}, s{S_FL}, {FL_KV}
v_and_b32 v16, 0x33, v1
v_bfe_u32 v17, v1, 2, 1
v_lshl_or_b32 v16, v17, 3, v16
v_bfe_u32 v17, v1, 3, 1
v_lshl_or_b32 v16, v17, 2, v16
v_lshlrev_b32 v12, 4, v16
s_lshl_b32 s{S_T3}, s{S_T1}, 3
s_add_u32 s{S_T3}, s{S_T3}, s{S_T0}
s_lshl_b32 s{S_T3}, s{S_T3}, 10
s_add_u32 s{S_T3}, s{S_T3}, {L_VR}
s_lshl_b32 s{S_SPIN}, s{S_T1}, 2
s_add_u32 s{S_SPIN}, s{S_SPIN}, s{S_T0}
s_lshl_b32 s{S_SPIN}, s{S_SPIN}, 10
v_add_u32 v150, s{S_SPIN}, v12       ; LDS copies: K beside the Q exchange, V in slot r of the ring of head 2c (+e)
v_add_u32 v12, s{S_T2}, v12
v_and_b32 v16, 15, v1
v_lshlrev_b32 v16, 4, v16
v_lshl_add_u32 v16, v15, 8, v16
v_bfe_u32 v17, v1, 4, 1
v_lshl_add_u32 v151, v17, 12, v16
v_add_u32 v151, s{S_T3}, v151
v_lshl_add_u32 v13, v17, 17, v16
v_add_u32 v13, s{S_T2}, v13
v_lshlrev_b32 v0, 2, v1
v_bfe_u32 v16, v1, 2, 2              ; r4
v_lshl_add_u32 v17, v15, 2, v16      ; 4h + r4
v_and_b32 v18, 1, v1
v_lshlrev_b32 v18, 5, v18            ; 32B * (c4&1)
v_bfe_u32 v19, v1, 4, 1
v_lshl_add_u32 v18, v19, 4, v18      ; + 16B * g'
v_bfe_u32 v19, v1, 1, 1
v_lshl_add_u32 v18, v19, 3, v18      ; + 8B * (c4>>1)
v_bfe_u32 v19, v1, 3, 1
v_xor_b32 v19, s{S_T1}, v19
v_lshl_add_u32 v18, v19, 6, v18
v_lshl_add_u32 v6, v17, 7, v18
s_lshl_b32 s{S_T2}, s{S_T1}, 15
v_add_u32 v6, s{S_T2}, v6
s_lshl_b32 s{S_OUTO}, s{S_RBO}, 17
s_lshl_b32 s{S_T2}, s{S_NB}, 7
s_add_u32 s{S_OUTO}, s{S_OUTO}, s{S_T2}
s_lshl_b32 s{S_T2}, s{S_T1}, 6
s_add_u32 s{S_OUTO}, s{S_OUTO}, s{S_T2}
v_lshrrev_b32 v16, 2, v1
v_and_b32 v17, 3, v1
v_lshl_add_u32 v7, v16, 1, s{S_T0}
v_lshlrev_b32 v7, 11, v7
v_lshl_add_u32 v7, v17, 4, v7
v_add_u32 v7, 1024, v7
s_lshl_b32 s{S_T2}, s{S_T0}, 5
v_add_u32 v9, s{S_T2}, v16
v_lshlrev_b32 v9, 11, v9
v_lshl_add_u32 v9, v17, 4, v9
s_lshl_b32 s{S_T2}, s{S_RBO}, 16
s_lshl_b32 s{S_T0}, s{S_T0}, 15
s_add_u32 s{S_T2}, s{S_T2}, s{S_T0}
s_add_u32 s{S_T2}, s{S_T2}, {WS_OB}
s_lshl_b32 s{S_T1}, s{S_T1}, 2
s_add_u32 s{S_T1}, s{S_T1}, s{S_PIT}
""")
    for g in range(4):
        a(f"s_add_u32 s{S_T0}, s{S_T1}, {g}\ns_and_b32 s{S_T0}, s{S_T0}, 7\ns_lshl_b32 s{S_T0}, s{S_T0}, 12\ns_add_u32 s{S_G[g]}, s{S_T2}, s{S_T0}")
    a(f"""
s_lshl_b32 s{S_T0}, s{S_RBO}, 7
s_lshl_b32 s{S_T1}, s{S_WAVE}, 13
s_add_u32 s{S_T0}, s{S_T0}, s{S_T1}
s_add_u32 s{S_T0}, s{S_T0}, {FL_OB}
v_lshlrev_b32 v8, 12, v1
v_add_u32 v8, s{S_T0}, v8
v_and_b32 v156, 7, v1
v_lshl_add_u32 v156, v15, 3, v156
v_lshlrev_b32 v156, 4, v156
v_mov_b32 v16, 0
ds_write_b32 v{VS}, v16
s_waitcnt lgkmcnt(0)
""")
    if cfg.touch:
        l = a.lab()
        a(f"""
s_cmp_lg_u32 s{S_WAVE}, 3
s_cbranch_scc1 {l}
v_lshlrev_b32 v16, 20, v1
v_add_u32 v16, 0xfff80, v16
s_mov_b64 exec, 0x3ff
buffer_load_dword v120, v16, {sr(S_WS)}, 0 offen sc1
buffer_load_dword v121, v16, {sr(S_OUT)}, 0 offen sc1
buffer_load_dword v122, v16, {sr(S_XB)}, 0 offen
s_mov_b64 exec, 1
buffer_load_dword v123, v0, {sr(S_WB)}, 0 offen
buffer_load_dword v124, v0, {sr(S_WOA)}, 0 offen
buffer_load_dword v125, v0, {sr(S_WOB)}, 0 offen
s_mov_b64 exec, -1
{l}:
""")
    stamp(0)
    def wread(dst, p, ks):
        sl = slot[p] - 3; base = 10 if sl < 8 else 11; off = (sl % 8) * 8192 + ks * 2048
        return [(f"ds_read_b64_tr_b16 {vr(dst,2)}, v{base} offset:{off}", dst), (f"ds_read_b64_tr_b16 {vr(dst+2,2)}, v{base} offset:{off+512}", dst+2)]
    def xread(dst, p, ks): return [(f"ds_read_b128 {vr(dst,4)}, v{2+ks} offset:{slot[p]*8192}", dst)]
    ACK, ACV, ACQ = 16, 32, 48
    BQ, BK, BV = 16, 32, 48
    KBF, VBF, QBF = 120, 128, 136
    MP, MD, MA = 120, 124, 140
    M = []; R = []
    def addm(d, x, y, first, tag): M.append(dict(txt=mfma(d, x, y, None if first else d), src=(x, y), tag=tag))
    def addr(lst, st, floor=-1):
        for txt, dst in lst:
            prev = [i for i, m in enumerate(M) if any(s <= dst < s + 4 for s in m["src"])]
            R.append(dict(txt=txt, stage=st, need=len(M), after=max(prev + [floor])))
    for g in range(32):
        s, ks = g // 4, g % 4; b = 64 + 12 * (g % 4)
        addr(xread(b, ("x", "A", s), ks) + wread(b + 4, ("w", "A", 1, s), ks), s)
        addm(ACK, b + 4, b, g == 0, ("K", g))
        addr(wread(b + 8, ("w", "A", 2, s), ks), s)
        addm(ACV, b, b + 8, g == 0, ("V", g))
    fl = len(M) - 1
    for g in range(32):
        s, ks = g // 4, g % 4; b = 64 + 8 * (g % 7)
        addr(xread(b, ("x", "A", s), ks) + wread(b + 4, ("w", "A", 0, s), ks), 8 + s // 2, fl)
        addm(ACQ, b + 4, b, g == 0, ("Q", g))
    fl = len(M) - 1
    for g in range(32):
        s, ks = g // 4, g % 4; b = 64 + 16 * (g % 3); st = 12 + s
        x, wq, wk, wv = b, b+4, b+8, b+12
        addr(xread(x, ("x", "B", s), ks) + wread(wk, ("w", "B", 1, s), ks), st, fl)
        addm(BK, wk, x, g == 0, ("B", 3*g))
        addr(wread(wv, ("w", "B", 2, s), ks), st, fl)
        addm(BV, x, wv, g == 0, ("B", 3*g+1))
        addr(wread(wq, ("w", "B", 0, s), ks), st, fl)
        addm(BQ, wq, x, g == 0, ("B", 3*g+2))

    st = dict(ri=0, issued=[], done=0, bar=-1, chk=None)
    vq = []
    def wait_upto(n):
        if st["done"] < n:
            k = min(15, len(st["issued"]) - n); a(f"s_waitcnt lgkmcnt({k})"); st["done"] = len(st["issued"]) - k
    def lds_op(t, stage):
        wait_upto(len(st["issued"]) - 14); a(t); st["issued"].append(stage)
    def retire(upto):
        idx = [i for i, x in enumerate(st["issued"]) if x <= upto]
        if idx: wait_upto(max(idx) + 1)
    def b_issue(p): issue(p, LX, LW); vq.extend([p[-1]] * 2)
    def flag(off): a(f"s_add_u32 s{S_T0}, s{S_FL}, {off - FL_KV}\ns_mov_b64 exec, 1\nbuffer_store_dword v12, v0, {sr(S_WS)}, s{S_T0} offen sc1\ns_mov_b64 exec, -1")
    def arrive(s):
        retire(12 + s - 2)
        a(f"s_waitcnt vmcnt({len(vq) - 1 - max(i for i, x in enumerate(vq) if x == s)})")
        lds_op(f"ds_write_b32 v{VS}, v{VV}", 99)
    def barrier(s):
        if s < 12:
            retire(s - 2)
            if s == PUB: a("s_waitcnt vmcnt(0)"); stamp(4)
            a(f"s_barrier   ; {stages[s]['n']}")
            if s == 0: stamp(1)
        else:
            if st["chk"] is not None: wait_upto(st["chk"])
            if cfg.vprio != cfg.gprio: a(f"s_setprio {cfg.vprio}")
            lds_wait(VA, VC, s - 12 + 3, preloaded=st["chk"] is not None)
            a(f"v_mov_b32 v{VV}, {s - 12 + 4}")
            if cfg.vprio != cfg.gprio: a(f"s_setprio {cfg.gprio}")
            if st["chk"] is None: st["done"] = len(st["issued"])
            st["chk"] = None
            if cfg.tailst == 2: a(f"s_memtime s[{4+2*(s-12)}:{5+2*(s-12)}]\ns_waitcnt lgkmcnt(0)")
        st["bar"] = s
    pos = {}
    def issue_reads(i, lim):
        while st["ri"] < len(R) and R[st["ri"]]["need"] <= lim and R[st["ri"]]["after"] <= i:
            r = R[st["ri"]]
            if r["stage"] > st["bar"]: barrier(r["stage"])
            lds_op(r["txt"], r["stage"]); pos[st["ri"]] = len(st["issued"]); st["ri"] += 1
    def pace(): a(f"s_waitcnt vmcnt({2 * (cfg.bdepth - 1)})")
    def b_first():
        for k, p in enumerate(bst[0]):
            if k == cfg.kvk:
                if cfg.local: poll(165, 8, S_WS, 164, sleep=cfg.ksleep)
                a(f"ds_write_b32 v{VS}, v{VV}\ns_waitcnt lgkmcnt(0)\nv_mov_b32 v{VV}, 3")
            if p not in pre: b_issue(p); pace()
        b_issue(bst[1][0]); pace()
        for p in bst[1][1:]: b_issue(p)
    def wo_issue(br, i):
        a(f"""
s_add_u32 m0, s{S_LB}, {(L_WOB if br == 'B' else L_WOA) + i*8192}
s_add_u32 s{S_T0}, s{S_PP}, {i*65536}
s_and_b32 s{S_T0}, s{S_T0}, 0x7ffff
buffer_load_dwordx4 v{WO}, {sr(S_WOB if br == 'B' else S_WOA)}, s{S_T0} offen lds
buffer_load_dwordx4 v{WO+1}, {sr(S_WOB if br == 'B' else S_WOA)}, s{S_T0} offen offset:1024 lds
""")
        vq.extend([99] * 2)
    def q_end():
        S0, S1 = 16, 32
        kstate["k"] = None
        a("s_nop 11")
        for i in range(16): a(f"v_mul_f32 v{ACQ+i}, s{S_C}, v{ACQ+i}")
        for i in range(8): a(f"v_cvt_pk_bf16_f32 v{QBF+i}, v{ACQ+2*i}, v{ACQ+2*i+1}")
        a(f"""
ds_write_b128 v{QXA}, {vr(QBF,4)}
{mfma(S0, KBF, QBF, None)}
{mfma(S1, KBF+4, QBF+4, None)}
ds_write_b128 v{QXA}, {vr(QBF+4,4)} offset:2048
s_nop 9
""")
        for e, Sx in enumerate((S0, S1)):
            m = NEGM + e
            a(f"v_max3_f32 v{m}, v{Sx}, v{Sx+1}, v{Sx+2}")
            for i in range(3, 15, 2): a(f"v_max3_f32 v{m}, v{m}, v{Sx+i}, v{Sx+i+1}")
            a(f"v_max_f32 v{m}, v{m}, v{Sx+15}\nv_mov_b32 v{Sx}, v{m}")
        a("s_nop 1")
        for e, Sx in enumerate((S0, S1)): a(f"v_permlane32_swap_b32 v{NEGM+e}, v{Sx}")
        a("s_nop 1")
        for e, Sx in enumerate((S0, S1)): a(f"v_max_f32 v{NEGM+e}, v{NEGM+e}, v{Sx}\nv_sub_f32 v{NEGM+e}, 0, v{NEGM+e}")
        a(f"ds_write_b32 v{QXA+1}, v{NEGM}\nds_write_b32 v{QXA+1}, v{NEGM+1} offset:512\ns_waitcnt lgkmcnt(0)\ns_barrier   ; hand-over")
        st["done"] = len(st["issued"])
        a(f"s_setprio {cfg.mprio}\nv_mov_b32 v{VV}, {G_KV}")
        a(f"""
v_mov_b32 v162, 0x1fe
v_mov_b32 v163, 0
v_lshlrev_b64 v[162:163], v14, v[162:163]
v_lshlrev_b32 v164, 2, v15
v_lshrrev_b64 v[162:163], v164, v[162:163]
v_alignbit_b32 v163, v163, v162, 8
v_not_b32 v163, v163
v_not_b32 v162, v162
v_or_b32 v162, s{S_HM}, v162
v_mov_b32 v164, 0x07070303
v_lshlrev_b32 v13, 4, v1
v_lshlrev_b32 v157, 3, v1
v_mov_b64 v[112:113], -1
v_mov_b64 v[114:115], -1
s_add_u32 s{S_T0}, s{S_FL}, {FL_MK - FL_KV - 128}
v_mov_b32 v150, s{S_T0}
s_lshl_b32 s{S_T0}, s{S_HG}, 2
s_add_u32 s{S_T0}, s{S_T0}, s{S_WAVE}
s_lshl_b32 s{S_T0}, s{S_T0}, 10
s_add_u32 s{S_T0}, s{S_T0}, {FL_KV}
v_lshlrev_b32 v165, 7, v1
v_add_u32 v165, s{S_T0}, v165
""")
        for aa in range(4):
            for b in range(4): a(f"v_bfe_i32 v{MD+4*aa+b}, v163, {8*aa+b}, 1\nv_lshlrev_b32 v{MD+4*aa+b}, 23, v{MD+4*aa+b}")
        for b in range(4): a(f"v_bfe_i32 v{MP+b}, v162, {b}, 1\nv_lshlrev_b32 v{MP+b}, 23, v{MP+b}")
        for k in range(8): a(f"v_perm_b32 v{MA+k}, v{MD+2*k+1}, v{MD+2*k}, v164")
        for k in range(2): a(f"v_perm_b32 v{MA+8+k}, v{MP+2*k+1}, v{MP+2*k}, v164")
        a(f"s_setprio {cfg.vprio}")
        lds_wait(VA, VC, 1, off=32, sleep=1); lds_wait(VA, VC, 1, off=16, sleep=1)
        b_first()
        a(f"s_setprio {cfg.gprio}")
        arrive(0)
    issue_reads(-1, cfg.la - 1)
    for i, m in enumerate(M):
        needed = [k for k, r in enumerate(R) if r["need"] == i]
        if needed:
            assert max(needed) < st["ri"], (i, m)
            wait_upto(pos[max(needed)])
        a(m["txt"])
        if m["tag"] == ("V", 28) and cfg.touch: a("s_waitcnt vmcnt(0)")
        if m["tag"] == ("V", 31):
            stamp(2)
            a("s_nop 9")
            a(f"s_mov_b32 s{S_T2}, 0x20000")
            for k in range(8): a(f"v_cvt_pk_bf16_f32 v{KBF+k}, v{ACK+2*k}, v{ACK+2*k+1}")
            a(f"buffer_store_dwordx4 {vr(KBF,4)}, v12, {sr(S_WS)}, 0 offen sc1")
            a(f"buffer_store_dwordx4 {vr(KBF+4,4)}, v12, {sr(S_WS)}, s{S_T2} offen sc1")
            for k in range(8): a(f"v_cvt_pk_bf16_f32 v{VBF+k}, v{ACV+2*k}, v{ACV+2*k+1}")
            a(f"buffer_store_dwordx4 {vr(VBF,4)}, v13, {sr(S_WS)}, 0 offen offset:1024 sc1")
            a(f"buffer_store_dwordx4 {vr(VBF+4,4)}, v13, {sr(S_WS)}, 0 offen offset:1536 sc1")
            a("v_mov_b32 v12, 1")
        if cfg.own and m["tag"][0] == "Q" and cfg.owng <= m["tag"][1] < cfg.owng + 4:
            assert st["bar"] == 11
            lds_op([f"ds_write_b128 v150, {vr(KBF,4)} offset:{L_KX}", f"ds_write_b128 v150, {vr(KBF+4,4)} offset:{L_KX+2048}",
                    f"ds_write_b128 v151, {vr(VBF,4)}", f"ds_write_b128 v151, {vr(VBF+4,4)} offset:512"][m["tag"][1] - cfg.owng], 99)
        if m["tag"] == ("Q", 31):
            stamp(3)
            q_end()
        if m["tag"][0] == "B":
            s, p_ = m["tag"][1] // 12, m["tag"][1] % 12
            if s == cfg.marks and p_ == 8:
                a(f"s_add_u32 s{S_T1}, s{S_OAO}, 32768")
                for so in (S_HLO, S_OAO, S_T1): a(f"buffer_store_dwordx4 v[112:115], v13, {sr(S_WS)}, s{so} offen sc1")
            if s == cfg.marks + 1 and p_ == 7: a("s_waitcnt vmcnt(0)"); flag(FL_MK)
            if s == 7 and p_ == 0: a(f"buffer_load_dword v151, v150, {sr(S_WS)}, 0 offen sc1")
            if s < 7 and p_ == 7: arrive(s + 1)
            if s < 7 and p_ == 8: lds_op(f"ds_read_b32 v{VC}, v{VA}", 99); st["chk"] = len(st["issued"])
            if p_ in (2, 5, 8):
                if s < 6: b_issue(bst[s + 2][1 + p_ // 3])
                else: wo_issue(*[[("B", 4), ("A", 2), ("B", 6)], [("B", 3), ("A", 1), ("B", 5)]][s - 6][p_ // 3])
            if s < 6 and p_ == 11:
                assert st["bar"] == 12 + s + 1
                b_issue(bst[s + 2][0])
        la = cfg.lab if (m["tag"][0] == "B" or m["tag"] == ("Q", 31)) else (5 if m["tag"][0] == "Q" or m["tag"] == ("V", 31) else cfg.la)
        issue_reads(i, i + la)
    assert st["ri"] == len(R) and st["bar"] == 19

    QB, KB, KHB, VB, VHB = 80, 88, 96, 104, 112
    SD, SP, OO = (16, 32), (48, 64), (16, 32)
    PD, PP = (48, 64), (56, 72)
    Z = ([2, 3, 4, 5, 10, 11], [116, 117, 118, 119, 150, 151])
    def progress(v, wait="lgkmcnt(0)"): a(f"v_mov_b32 v{VV}, {v}\ns_waitcnt {wait}\nds_write_b32 v{VS}, v{VV}")
    def wo_paced(lst):
        for sl in lst: wo_issue(*sl); a(f"s_waitcnt vmcnt({2 * (cfg.wodepth - 1)})")
    a(f"s_setprio {cfg.vprio}")
    progress(G_BDONE)
    a(f"""
s_nop 5
""")
    for k in range(8): a(f"v_cvt_pk_bf16_f32 v{KB+k}, v{BK+2*k}, v{BK+2*k+1}")
    for k in range(8): a(f"v_min_u32 v{KB+k}, -2, v{KB+k}")
    a(f"""
s_mov_b32 exec_lo, 0xff000000
s_mov_b32 exec_hi, 0xff000000
buffer_store_dwordx4 {vr(KB,4)}, v156, {sr(S_WS)}, s{S_HLO} offen sc1
buffer_store_dwordx4 {vr(KB+4,4)}, v156, {sr(S_WS)}, s{S_HLO} offen offset:256 sc1
s_mov_b64 exec, -1
""")
    for k in range(8): a(f"v_cvt_pk_bf16_f32 v{VB+k}, v{BV+2*k}, v{BV+2*k+1}")
    a(f"""
v_min_u32 v{VB+6}, -2, v{VB+6}
v_min_u32 v{VB+7}, -2, v{VB+7}
buffer_store_dwordx2 {vr(VB+6,2)}, v157, {sr(S_WS)}, s{S_HLO} offen offset:512 sc1
""")
    for k in range(8): a(f"v_cvt_pk_bf16_f32 v{QB+k}, v{BQ+2*k}, v{BQ+2*k+1}")
    stamp(5)
    lds_wait(VA, VC, G_BDONE)
    a(mfma(SD[0], KB, QB, MD))
    a(mfma(SD[1], KB+4, QB+4, MD))
    wo_paced([("B", 0), ("B", 1), ("B", 2)][:cfg.hw])
    for e in range(2):
        for b in range(4): a(f"v_max3_f32 v{Z[e][b]}, v{SD[e]+b}, v{SD[e]+4+b}, v{SD[e]+8+b}")
    lh, lo_ = a.lab(), a.lab()
    a(f"""
s_sub_u32 s{S_HLO}, s{S_HLO}, 4096
s_cmp_eq_u32 s{S_RB}, 0
s_cselect_b32 s{S_HLO}, 0x80000000, s{S_HLO}
s_cbranch_scc1 {lh}a
""")
    poll(150, 1, S_WS, 151, preloaded=True, sleep=cfg.psleep)
    a(f"""
{lh}a:
s_mov_b32 s{S_SPIN}, {cfg.spin}
{lh}:
buffer_load_dwordx4 {vr(KHB,4)}, v156, {sr(S_WS)}, s{S_HLO} offen sc1
buffer_load_dwordx4 {vr(KHB+4,4)}, v156, {sr(S_WS)}, s{S_HLO} offen offset:256 sc1
buffer_load_dwordx2 v[152:153], v157, {sr(S_WS)}, s{S_HLO} offen offset:512 sc1
s_waitcnt vmcnt(0)
v_max3_u32 v154, v{KHB}, v{KHB+1}, v{KHB+2}
v_max3_u32 v154, v154, v{KHB+3}, v{KHB+4}
v_max3_u32 v154, v154, v{KHB+5}, v{KHB+6}
v_max3_u32 v154, v154, v{KHB+7}, v152
v_max_u32 v154, v154, v153
v_cmp_eq_u32 vcc, -1, v154
s_cbranch_vccz {lo_}
s_sleep {cfg.psleep}
s_sub_u32 s{S_SPIN}, s{S_SPIN}, 1
s_cmp_lg_u32 s{S_SPIN}, 0
s_cbranch_scc1 {lh}
{lo_}:
v_mov_b64 v[154:155], 0
""")
    VHB = 152
    rest = [("B", 0), ("B", 1), ("B", 2)][cfg.hw:] + [("B", 7), ("A", 3), ("A", 4), ("A", 5), ("A", 6), ("A", 7)]
    stamp(10)
    a(mfma(SP[0], KHB, QB, MP))
    a(mfma(SP[1], KHB+4, QB+4, MP))
    wo_issue(*rest.pop(0))
    a("s_nop 5")
    for e in range(2):
        z = Z[e]
        for b in range(4): a(f"v_max3_f32 v{z[b]}, v{z[b]}, v{SD[e]+12+b}, v{SP[e]+b}")
        a(f"v_max3_f32 v{z[4]}, v{z[0]}, v{z[1]}, v{z[2]}\nv_max_f32 v{z[4]}, v{z[4]}, v{z[3]}\nv_mov_b32 v{z[5]}, v{z[4]}")
    for e in range(2): a(f"v_mov_b64 {vr(PP[e]+2,2)}, 0")
    for e in range(2): a(f"v_permlane32_swap_b32 v{Z[e][4]}, v{Z[e][5]}")
    a("s_nop 1")
    for e in range(2):
        z = Z[e]
        a(f"v_max_f32 v{z[4]}, v{z[4]}, v{z[5]}\nv_mul_f32 v{z[4]}, s{S_C}, v{z[4]}")
        for b in range(4): a(f"v_fma_f32 v{z[b]}, v{z[b]}, s{S_C}, -v{z[4]}")
        for b in range(4): a(f"v_exp_f32 v{z[b]}, v{z[b]}")
    for e in range(2):
        z = Z[e]
        a(f"v_add_f32 v{z[4]}, v{z[0]}, v{z[1]}\nv_add_f32 v{z[5]}, v{z[2]}, v{z[3]}\nv_add_f32 v{z[4]}, v{z[4]}, v{z[5]}\nv_mov_b32 v{z[5]}, v{z[4]}")
    a("s_nop 1")
    for e in range(2): a(f"v_permlane32_swap_b32 v{Z[e][4]}, v{Z[e][5]}")
    wo_issue(*rest.pop(0))
    for e in range(2): a(f"v_add_f32 v{Z[e][4]}, v{Z[e][4]}, v{Z[e][5]}")
    for e in range(2): a(f"v_rcp_f32 v{Z[e][4]}, v{Z[e][4]}")
    a("s_nop 0")
    for e in range(2):
        z = Z[e]
        for b in range(4): a(f"v_mul_f32 v{z[b]}, v{z[b]}, v{z[4]}")
        a(f"v_cvt_pk_bf16_f32 v{z[0]}, v{z[0]}, v{z[1]}\nv_cvt_pk_bf16_f32 v{z[1]}, v{z[2]}, v{z[3]}")
        for k in range(8): a(f"v_bfi_b32 v{PD[e]+k}, v{MA+k}, 0, v{z[k&1]}")
        for k in range(2): a(f"v_bfi_b32 v{PP[e]+k}, v{MA+8+k}, 0, v{z[k]}")
        a(mfma(OO[e], VB, PD[e], None)); a(mfma(OO[e], VB+4, PD[e]+4, OO[e])); a(mfma(OO[e], VHB, PP[e], OO[e]))
    for k in range(4): a(f"v_cvt_pk_bf16_f32 v{QB+k}, v{OO[0]+2*k}, v{OO[0]+2*k+1}")
    a(f"""
buffer_store_dwordx4 {vr(QB,4)}, v13, {sr(S_WS)}, s{S_OBO} offen sc1
; v5: wo fragments of the column block sent to the partner; v10/v11: exchange slots (in the V rings once they are dead)
v_xor_b32 v5, 64, v6
s_lshl_b32 s{S_T0}, s{S_WAVE}, 12
v_add_u32 v10, s{S_T0}, v13
v_xor_b32 v11, 0x2000, v10
v_add_u32 v10, {L_VR}, v10
v_add_u32 v11, {L_VR}, v11
s_nop 1
""")
    for k in range(4): a(f"v_cvt_pk_bf16_f32 v{QB+4+k}, v{OO[1]+8+2*k}, v{OO[1]+8+2*k+1}")
    a(f"buffer_store_dwordx4 {vr(QB+4,4)}, v13, {sr(S_WS)}, s{S_OBO} offen offset:1024 sc1")
    stamp(6)
    wo_issue(*rest.pop(0))
    progress(G_MARK, "vmcnt(0)")
    l = a.lab()
    a(f"s_cmp_lg_u32 s{S_WAVE}, 0\ns_cbranch_scc1 {l}")
    lds_wait(VA, VC, G_MARK, sleep=1)
    flag(FL_OB)
    a(f"{l}:")
    wo_paced(rest)
    stamp(7)
    lds_wait(VS, VC, 1, off=64, sleep=8)
    if not cfg.nowait: poll(8, 2, S_WS, 3, sleep=cfg.psleep)
    progress(G_WO, "vmcnt(0)")
    lds_wait(VA, VC, G_WO, sleep=1)
    stamp(8)
    OF = [64 + 4*j for j in range(16)]
    AK, AS = 32, 48
    def ofrag_loads(g0, g1):
        for j in range(4*g0, 4*g1):
            a(f"buffer_load_dwordx4 {vr(OF[j],4)}, v13, {sr(S_WS)}, s{S_G[j//4]} offen offset:{(j%4)*1024} sc1")
    def wrd(n, j):
        b = 128 + 8 * (n % 3)
        for cb in range(2):
            a(f"ds_read_b64_tr_b16 {vr(b+4*cb,2)}, v{6-cb} offset:{j*2048}")
            a(f"ds_read_b64_tr_b16 {vr(b+4*cb+2,2)}, v{6-cb} offset:{j*2048 + 1024}")
    def omm(seq, n, stop=16):
        b = lambda n: 128 + 8 * (n % 3)
        if n < 13:
            a(f"s_waitcnt lgkmcnt({4*min(2, stop-1-n)})")
            a(mfma(AS, b(n)+4, OF[seq[n]], AS if n else None))
            a(mfma(AK, b(n), OF[seq[n]], AK if n else None))
            if n + 3 < stop: wrd(n + 3, seq[n + 3])
        elif n == 13:
            for m_ in (13, 14, 15): a(f"s_waitcnt lgkmcnt({4*(15-m_)})"); a(mfma(AS, b(m_)+4, OF[seq[m_]], AS))
            for m_ in (13, 14, 15): a(mfma(AK, b(m_), OF[seq[m_]], AK))
    def send(off, nop=8):
        a(f"s_nop {nop}")
        for k in range(4): a(f"ds_write_b128 v10, {vr(AS+4*k,4)} offset:{off + k*1024}")
        a("s_waitcnt lgkmcnt(0)")
    def out_store(pk, vout, step, pol):
        a(f"s_add_u32 s{S_T0}, s{S_OUTO}, {step}")
        for i in range(2):
            a(f"buffer_store_dwordx4 {vr(pk+4*i,4)}, v{vout}, {sr(S_OUT)}, s{S_T0 if i else S_OUTO} offen {['', 'sc1', 'nt', 'sc0 sc1', 'sc1 nt', 'sc0 sc1 nt'][pol]}")
    def finish(off, pk):
        for k in range(4): a(f"ds_read_b128 {vr(AS+4*k,4)}, v11 offset:{off + k*1024}")
        for k in range(4):
            a(f"s_waitcnt lgkmcnt({[3, 2, 1, 0][k]})")
            if k == 3: a(f"ds_write_b128 v152, {vr(pk,4)} offset:{off}")
            for i in range(4): a(f"v_add_f32 v{AK+4*k+i}, v{AK+4*k+i}, v{AS+4*k+i}")
            for i in range(2): a(f"v_cvt_pk_bf16_f32 v{pk+2*k+i}, v{AK+4*k+2*i}, v{AK+4*k+2*i+1}")
        a(f"ds_write_b128 v153, {vr(pk+4,4)} offset:{off}")
        a(f"ds_read_b128 {vr(pk,4)}, v154 offset:{off}\nds_read_b128 {vr(pk+4,4)}, v154 offset:{off+1024}")
    og = [3, 0, 1, 2]; sb = [4*g + i for g in og for i in range(4)]; nb_ = 4 * cfg.nbg
    for g in og[:2]: ofrag_loads(g, g + 1)
    a(f"s_setprio {cfg.oprio}")
    for n in range(3): wrd(n, sb[n])
    for q in range(cfg.nbg):
        a("s_waitcnt vmcnt(4)" if q < 3 else "s_waitcnt vmcnt(0)")
        if q < 2: ofrag_loads(og[q+2], og[q+2] + 1)
        for n in range(4*q, 4*q+4): omm(sb, n, nb_)
    if cfg.nbg == 1: a("s_waitcnt vmcnt(4)"); ofrag_loads(og[3], og[3] + 1)
    a(f"s_setprio {cfg.vprio}")
    progress(G_BRD)
    lds_wait(VA, VC, G_BRD)
    wo_issue("A", 0)
    for n in range(nb_, nb_ + 3): wrd(n, sb[n])
    a(f"""
s_xor_b32 s{S_T0}, s{S_WAVE}, 2
s_lshl_b32 s{S_T0}, s{S_T0}, 12
s_add_u32 s{S_T0}, s{S_T0}, {L_VR}
v_bfe_u32 v152, v1, 1, 2
v_lshlrev_b32 v153, 1, v15
v_xor_b32 v152, v152, v153
v_lshlrev_b32 v152, 4, v152
v_lshl_add_u32 v152, v14, 6, v152
v_add_u32 v152, s{S_T0}, v152
v_xor_b32 v153, 16, v152
v_bfe_u32 v154, v1, 3, 2
v_lshlrev_b32 v154, 4, v154
v_xor_b32 v154, v154, v11
""")
    for g in range(4): a(f"s_sub_u32 s{S_G[g]}, s{S_G[g]}, {WS_OB - WS_OA}")
    a(f"s_mov_b32 s{S_SPIN}, {cfg.spin}\ns_setprio 3\ns_waitcnt vmcnt(0)")
    stamp(9)
    a("s_barrier   ; the A waves have issued their O_A stores")
    stamp(11)
    for n in range(nb_, 16): omm(sb, n)
    a(f"v_add_u32 v6, {L_WOA}, v6\nv_add_u32 v5, {L_WOA}, v5")
    send(0, 6)
    stamp(12)
    a("s_barrier")
    stamp(13)
    for q, g in enumerate(og):
        ofrag_loads(g, g + 1)
        if q < 3: a("s_barrier")
    finish(0, 16)
    a("s_waitcnt lgkmcnt(2)")
    for n in range(3): wrd(n, sb[n])
    def ocheck(g):
        r = OF[4*g]
        return [f"v_max3_u32 v3, v{r}, v{r+1}, v{r+2}"] + [f"v_max3_u32 v3, v3, v{r+i}, v{r+i+1}" for i in range(3, 15, 2)] + [f"v_max_u32 v3, v3, v{r+15}", "v_cmp_eq_u32 vcc, -1, v3"]
    a("s_waitcnt vmcnt(12)")
    for x in ocheck(og[0]): a(x)
    for q, g in enumerate(og):
        a(f"s_cbranch_vccnz L_retry{g}\nL_ok{g}:")
        if cfg.tailst == 1: stamp(1 + q)
        if q == 3: out_store(16, 7, 65536, cfg.stb)
        for n in range(4*q, 4*q+4):
            if n % 4 == 3 and q < 3:
                b = 128 + 8 * (n % 3); ck = ocheck(og[q+1])
                a(f"s_waitcnt vmcnt({8-4*q}) lgkmcnt(8)")
                a(mfma(AS, b+4, OF[sb[n]], AS))
                for x in ck[:5]: a(x)
                a(mfma(AK, b, OF[sb[n]], AK))
                wrd(n + 3, sb[n + 3])
                for x in ck[5:]: a(x)
            else: omm(sb, n)
    send(16384)
    a("s_barrier")
    finish(16384, 24)
    a("s_waitcnt lgkmcnt(0)")
    out_store(24, 9, 32768, cfg.sta)
    stamp(14)
    if cfg.probe >= -1:
        if cfg.probe == 15: a("s_waitcnt vmcnt(0)"); stamp(15)
        if cfg.probe == -1: a("s_mov_b32 s4, s92")
        a("s_add_u32 s4, s4, 6000\ns_mov_b32 s5, 200000\nL_pad:\ns_memrealtime s[90:91]\ns_waitcnt lgkmcnt(0)\ns_sub_u32 s6, s90, s4\ns_cmp_ge_i32 s6, 0\ns_cbranch_scc1 L_exit\ns_sub_u32 s5, s5, 1\ns_cmp_lg_u32 s5, 0\ns_cbranch_scc1 L_pad")
    if cfg.stamps:
        a("s_branch L_dump\nL_end:\ns_barrier\ns_barrier\ns_barrier\ns_barrier\nL_dump:")
        a(f"s_waitcnt vmcnt(0)\ns_memtime s[90:91]\ns_memrealtime s[96:97]\ns_waitcnt lgkmcnt(0)\ns_mov_b32 s{S_STAMP+15}, s90")
        a(f"s_mov_b32 s{S_STAMP+16}, s94\ns_mov_b32 s{S_STAMP+17}, s92\ns_mov_b32 s{S_STAMP+18}, s96\ns_getreg_b32 s{S_STAMP+19}, hwreg(HW_REG_XCC_ID)")
        a(f"s_lshl_b32 s{S_T0}, s2, 4\ns_add_u32 s{S_T0}, s{S_T0}, s{S_WAVE}\ns_lshl_b32 s{S_T0}, s{S_T0}, 7\ns_add_u32 s{S_T0}, s{S_T0}, {WS_ST}")
        a("v_mov_b32 v8, 0\ns_mov_b64 exec, 1")
        for i in range(5):
            for k in range(4): a(f"v_mov_b32 v{12+k}, s{S_STAMP+4*i+k}")
            a(f"buffer_store_dwordx4 v[12:15], v8, {sr(S_WS)}, s{S_T0} offen offset:{16*i}\ns_nop 1")
    else: a("L_end:")
    a("L_exit:\ns_endpgm")
    for q, g in enumerate(og):
        a(f"L_retry{g}:\ns_cmp_eq_u32 s{S_SPIN}, 0\ns_cbranch_scc1 L_ok{g}\ns_sub_u32 s{S_SPIN}, s{S_SPIN}, 1")
        ofrag_loads(g, g + 1)
        a("s_waitcnt vmcnt(0)")
        for x in ocheck(g): a(x)
        a(f"s_cbranch_vccnz L_retry{g}")
        for g2 in og[q+1:]: ofrag_loads(g2, g2 + 1)
        a(f"s_branch L_ok{g}")
    a("L_code_end:")

    head = open("cdna_kernels/" + NAME + ".s.ref").read().split("\n")
    top = [l for l in head if l.startswith(";") and "@launch" not in l and not l.startswith("; Override") and not l.startswith("; grid=")]
    out = "\n".join(top) + f"""
; @launch grid=(256,1,1) block=(768,1,1) lds={LDS_BYTES}
.amdgcn_target "amdgcn-amd-amdhsa--gfx950"
.text
.globl {NAME}_kernel
.p2align 8
.type {NAME}_kernel,@function
{NAME}_kernel:
""" + a.text() + f""".section .rodata,"a"
.p2align 6
.amdhsa_kernel {NAME}_kernel
  .amdhsa_next_free_vgpr 168
  .amdhsa_next_free_sgpr 102
  .amdhsa_accum_offset 168
  .amdhsa_group_segment_fixed_size 0
  .amdhsa_kernarg_size 72
  .amdhsa_user_sgpr_count 2
  .amdhsa_user_sgpr_kernarg_segment_ptr 1
  .amdhsa_system_sgpr_workgroup_id_x 1
.end_amdhsa_kernel
"""
    return out

if __name__ == "__main__":
    cfg = Cfg()
    outp = "cdna_kernels/" + NAME + ".s"
    for arg in sys.argv[1:]:
        if arg.startswith("-o"): outp = arg[2:]
        else:
            k, v = arg.split("="); setattr(cfg, k, type(getattr(Cfg, k))(int(v)))
    open(outp, "w").write(gen(cfg))
    import subprocess
    r = subprocess.run(["clang", "-x", "assembler", "-target", "amdgcn-amd-amdhsa", "-mcpu=gfx950", "-c", outp, "-o", "gen_chk.o"], capture_output=True, text=True)
    if r.returncode: print(r.stderr); sys.exit(1)
    print("wrote", outp)
```
